```python
import torch

def _softmax(x, axis=-1):
    return torch.softmax(x, dim=axis)
def _gelu(x):
    return torch.nn.functional.gelu(x, approximate="tanh")
def _silu(x):
    return torch.nn.functional.silu(x)
def _sigmoid(x):
    return torch.sigmoid(x)
def _layernorm(x, axis=-1, eps=1e-5):
    m = x.mean(dim=axis, keepdim=True)
    v = x.var(dim=axis, keepdim=True, unbiased=False)
    return (x - m) / torch.sqrt(v + eps)
def _scatter_add(tgt, idx, src, axis=0):
    return tgt.clone().index_add_(axis, idx, src)
def _segment_sum(src, seg, n):
    out = torch.zeros((n,) + src.shape[1:], dtype=src.dtype)
    return out.index_add_(0, seg, src)
def _pad(x, pw):
    flat = tuple(v for pair in reversed(pw) for v in pair)
    return torch.nn.functional.pad(x, flat)

kernel_name = 'concat_heads__mha_block_cached__gqa_block_cached__near_ridge'

def setup_inputs():

    _w = (lambda a: (lambda t: t.to(torch.bfloat16) if t.is_floating_point() else t)(torch.as_tensor(a)))
    def _A_setup():
        B, Sq, D = 16, 112, 448
        H, Sk, Dh = 16, 512, 256
        return {
            "x": _w((lambda *s: torch.randn(*s, dtype=torch.bfloat16) * 0.8)(B, Sq, D)),
            "k_cache": _w((lambda *s: torch.randn(*s, dtype=torch.bfloat16) * 0.8)(B, H, Sk, Dh)),
            "v_cache": _w((lambda *s: torch.randn(*s, dtype=torch.bfloat16) * 0.05)(B, H, Sk, Dh)),
            "wq": _w((lambda *s: torch.randn(*s, dtype=torch.bfloat16) * 0.8)(D, H * Dh) * (D ** -0.5)),
            "wo": _w((lambda *s: torch.randn(*s, dtype=torch.bfloat16) * 0.05)(H * Dh, D) * ((H * Dh) ** -0.5)),
        }
    _A_in = _A_setup()

    def _B_setup():
        B, Sq, D = 16, 112, 448
        Hq, Hkv, Sk, Dh = 16, 16, 512, 256
        assert Hq % Hkv == 0, (Hq, Hkv)
        return {
            "x": _w((lambda *s: torch.randn(*s, dtype=torch.bfloat16) * 0.8)(B, Sq, D)),
            "k_cache": _w((lambda *s: torch.randn(*s, dtype=torch.bfloat16) * 0.8)(B, Hkv, Sk, Dh)),
            "v_cache": _w((lambda *s: torch.randn(*s, dtype=torch.bfloat16) * 0.05)(B, Hkv, Sk, Dh)),
            "wq": _w((lambda *s: torch.randn(*s, dtype=torch.bfloat16) * 0.8)(D, Hq * Dh) * (D ** -0.5)),
            "wo": _w((lambda *s: torch.randn(*s, dtype=torch.bfloat16) * 0.05)(Hq * Dh, D) * ((Hq * Dh) ** -0.5)),
        }
    _B_in = _B_setup()

    return {
        "A_x": _A_in["x"],
        "A_k_cache": _A_in["k_cache"],
        "A_v_cache": _A_in["v_cache"],
        "A_wq": _A_in["wq"],
        "A_wo": _A_in["wo"],
        "B_x": _B_in["x"],
        "B_k_cache": _B_in["k_cache"],
        "B_v_cache": _B_in["v_cache"],
        "B_wq": _B_in["wq"],
        "B_wo": _B_in["wo"],
    }

def reference(A_x, A_k_cache, A_v_cache, A_wq, A_wo, B_x, B_k_cache, B_v_cache, B_wq, B_wo):
    def _A_ref(x, k_cache, v_cache, wq, wo):
        B, Sq, D = x.shape
        H, Dh = 16, 256
        q = (lambda x, *d: x.permute(*d))((x @ wq).reshape(B, Sq, H, Dh), 0, 2, 1, 3)
        scores = torch.einsum("bhqd,bhkd->bhqk", q, k_cache) * (Dh ** -0.5)
        p = _softmax(scores, axis=-1)
        o = torch.einsum("bhqk,bhkd->bhqd", p, v_cache)
        return (lambda x, *d: x.permute(*d))(o, 0, 2, 1, 3).reshape(B, Sq, H * Dh) @ wo

    def _B_ref(x, k_cache, v_cache, wq, wo):
        B, Sq, D = x.shape
        Hq, Dh = 16, 256
        Hkv = k_cache.shape[1]
        rep = Hq // Hkv
        q = (lambda x, *d: x.permute(*d))((x @ wq).reshape(B, Sq, Hq, Dh), 0, 2, 1, 3)
        k = (lambda x, n, axis: torch.repeat_interleave(x, n, dim=axis))(k_cache, rep, axis=1)
        v = (lambda x, n, axis: torch.repeat_interleave(x, n, dim=axis))(v_cache, rep, axis=1)
        scores = torch.einsum("bhqd,bhkd->bhqk", q, k) * (Dh ** -0.5)
        p = _softmax(scores, axis=-1)
        o = torch.einsum("bhqk,bhkd->bhqd", p, v)
        return (lambda x, *d: x.permute(*d))(o, 0, 2, 1, 3).reshape(B, Sq, Hq * Dh) @ wo

    a = _A_ref(A_x, A_k_cache, A_v_cache, A_wq, A_wo)
    b = _B_ref(B_x, B_k_cache, B_v_cache, B_wq, B_wo)
    return torch.concatenate([a, b], axis=-1)
```

```python
import re
REG = re.compile(r'^-?(?:abs\()?([va])(?:(\d+)|\[(\d+):(\d+)\])\)?$')
SREG = re.compile(r'^s(?:(\d+)|\[(\d+):(\d+)\])$')
TRANS = ("v_exp_f32", "v_rcp_f32", "v_log_f32", "v_rsq_f32", "v_sqrt_f32")

def regs(tok):
    m = REG.match(tok)
    if not m: return []
    off = 0 if m.group(1) == 'v' else 256
    if m.group(2) is not None: return [off + int(m.group(2))]
    return list(range(off + int(m.group(3)), off + int(m.group(4)) + 1))
def sregs(tok):
    if tok == "vcc": return ["vcc"]
    if tok == "m0": return ["m0"]
    if tok == "exec": return ["exec"]
    m = SREG.match(tok)
    if not m: return []
    if m.group(1) is not None: return [int(m.group(1))]
    return list(range(int(m.group(2)), int(m.group(3)) + 1))

class Ins:
    __slots__ = ("t", "k", "vr", "vw", "sr", "sw", "A", "B", "C", "D", "ws", "wide")
    def __init__(s, t):
        s.t = t; s.vr = set(); s.vw = set(); s.sr = set(); s.sw = set(); s.ws = 1; s.wide = None
        s.A = s.B = s.C = s.D = None
        body = t.split(";")[0].strip()
        if body.endswith(":") or body.startswith(".") or not body:
            s.k = "label"; s.ws = 0; return
        p = body.split(None, 1); mn = p[0]
        rest = p[1] if len(p) > 1 else ""
        ops = [x.strip() for x in rest.split(",")]
        mods = []
        if ops and ops[-1]:
            q = ops[-1].split(); ops[-1] = q[0]; mods = q[1:]
        if mn.startswith("v_mfma"):
            s.k = "mfma"; s.D = set(regs(ops[0])); s.A = set(regs(ops[1])); s.B = set(regs(ops[2])); s.C = set(regs(ops[3]))
            s.vw = s.D; s.vr = s.A | s.B | s.C
        elif mn.startswith("v_"):
            s.k = "trans" if mn in TRANS else "valu"
            if mn.startswith("v_cmp"):
                s.sw = set(sregs(ops[0])); src = ops[1:]
            elif mn.startswith("v_readfirstlane") or mn.startswith("v_readlane"):
                s.k = "rdlane"; s.sw = set(sregs(ops[0])); src = ops[1:]
            elif mn.startswith("v_permlane"):
                s.k = "perm"; s.vw = set(regs(ops[0]) + regs(ops[1])); src = ops
            else:
                s.vw = set(regs(ops[0])); src = ops[1:]
                if mn.startswith("v_fmac"): src = ops
                if "_dpp" in mn: s.k = "dpp"
            for o in src:
                s.vr |= set(regs(o)); s.sr |= set(sregs(o))
        elif mn.startswith("ds_read"):
            s.k = "ds"; s.vw = set(regs(ops[0])); s.vr = set(regs(ops[1]))
        elif mn.startswith("ds_write"):
            s.k = "ds"; s.vr = set(regs(ops[0]) + regs(ops[1]))
        elif mn.startswith("buffer_load") or mn.startswith("global_load"):
            s.k = "vmem"
            if "lds" in mods:
                s.vr = set(regs(ops[0])); s.sr = {"m0"}; o2 = ops[1:]
            else:
                s.vw = set(regs(ops[0])); s.vr = set(regs(ops[1])); o2 = ops[2:]
            for o in o2: s.sr |= set(sregs(o))
        elif mn.startswith("buffer_store") or mn.startswith("buffer_atomic"):
            s.k = "vmem"; s.vr = set(regs(ops[0]) + regs(ops[1]))
            if "x4" in mn or "x3" in mn: s.wide = set(regs(ops[0]))
            if mn.startswith("buffer_atomic") and "sc0" in mods: s.vw = set(regs(ops[0]))
            for o in ops[2:]: s.sr |= set(sregs(o))
        elif mn.startswith("buffer_"):
            s.k = "vmem"
        elif mn == "s_nop":
            s.k = "nop"; s.ws = int(ops[0], 0) + 1
        elif mn.startswith("s_"):
            s.k = "salu"
            if ops and ops[0] and not mn.startswith(("s_cmp", "s_cbranch", "s_branch", "s_waitcnt", "s_barrier", "s_setpc", "s_endpgm", "s_setprio", "s_sleep")):
                s.sw = set(sregs(ops[0]))
        else:
            raise ValueError("unknown instr " + t)

VALU = ("valu", "trans", "rdlane", "perm", "dpp")
def need(p, c):
    n = 0
    if p.k in VALU:
        if c.k == "mfma" and p.vw & c.vr: n = max(n, 2)
        if p.k == "trans" and c.k in VALU and c.k != "trans" and p.vw & c.vr: n = max(n, 1)
        if p.k == "trans" and c.k == "trans" and p.vw & c.vr: n = max(n, 1)
        if c.k in ("perm", "dpp") and p.vw & c.vr: n = max(n, 2)
        if c.k == "rdlane" and p.vw & c.vr: n = max(n, 1)
        if p.sw:
            if c.k == "vmem" and p.sw & c.sr: n = max(n, 5)
            if c.k in VALU and p.sw & c.sr: n = max(n, 2)
            if c.k == "salu": n = max(n, 1) if p.k == "rdlane" else n
    if p.k == "mfma":
        if c.k == "mfma":
            if p.D & (c.A | c.B): n = max(n, 12)
            if p.D & c.C and p.D != c.C: n = max(n, 10)
            if p.D & c.D and p.D != c.D: n = max(n, 10)
        elif c.k in VALU or c.k in ("ds", "vmem"):
            if p.D & (c.vr | c.vw): n = max(n, 12)
            if c.k in VALU and p.C & c.vw: n = max(n, 7)
    if p.k == "salu" and "m0" in p.sw and c.k == "vmem" and "m0" in c.sr: n = max(n, 1)
    if p.wide and p.wide & c.vw: n = max(n, 2)
    return n

def fix_hazards(lines, margin=0):
    out = []
    nops = 0
    for t in lines:
        c = Ins(t)
        if c.k not in ("label", "nop"):
            d = 0; req = 0
            for p in reversed(out):
                if d >= 14: break
                r = need(p, c)
                if r and r + (margin if r >= 7 else 0) - d > req: req = r + (margin if r >= 7 else 0) - d
                d += p.ws
            while req > 0:
                k = min(req, 16); out.append(Ins(f"s_nop {k-1}")); req -= k; nops += 1
        out.append(c)
    return [i.t for i in out], nops
```

```python
import sys, math, struct
from asmlib import fix_hazards
NAME = "concat_heads__mha_block_cached__gqa_block_cached__near_ridge"

def f2u(x): return struct.unpack("<I", struct.pack("<f", x))[0]

OACC = 0; QF = 128; S = 192
FR = [("v", 208), ("v", 212), ("v", 216), ("v", 220), ("a", 240), ("a", 244), ("a", 248), ("a", 252)]
KA = 224; VA = 232; WA = 236
KD = 240; VD = 242; WD = 244
XV = 246; MC = 247; THR = 248; M = 249; LA = 250; LB = 251; TA = 252; TB = 253; T0 = 254; T1 = 255
XA = 128
O0P = 128
PP = 0
OB = [80, 192]
sK, sV, sWQ, sWO, sX, sWS = 8, 12, 16, 20, 24, 28
sKV, sLW, sWQB, sWOB, sT, sC, sK0, sST = 32, 33, 34, 35, 36, 37, 38, 39
sRHO = 40
sRET = 56
sWV = 58
sSTAMP = 64

def R(f, b, n=1): return f"{f}{b}" if n == 1 else f"{f}[{b}:{b+n-1}]"

class Gen:
    def __init__(g, kvpol="nt", wpol="nt", xpol="", stpol="", dist=4, boff=3, stamps=False, pace=0.45, kv0=2, rot=True,
                 thr_log2=8.0, dbg=None, rdpol=""):
        g.kvpol, g.wpol, g.xpol, g.stpol, g.dist, g.boff, g.stamps = kvpol, wpol, xpol, stpol, dist, boff, stamps
        g.pace, g.kv0, g.rot, g.thr_log2, g.dbg, g.rdpol = pace, kv0, rot, thr_log2, dbg, rdpol
        g.L = []
        g.ops = []; g.steps = []; g.fill = {}
        g.nlab = 0

    def A(g, t): g.L.append(t)

    def add_op(g, tile, reads, B, D, zero):
        g.ops.append(dict(tile=tile, reads=reads, B=B, D=D, zero=zero, step=len(g.steps) - 1))
    def begin_step(g, tiles, xneed=(), name=""):
        g.steps.append(dict(tiles=tiles, first=len(g.ops), xneed=list(xneed), name=name))
    def spread(g, instrs, p0, p1):
        n = len(instrs); k = p1 - p0 + 1
        for i, ins in enumerate(instrs):
            p = p0 + (i * k) // n
            g.fill.setdefault(p, []).extend(ins if isinstance(ins, list) else [ins])

    def ops_wq(g, h, i):
        t = ("q", h, i)
        for m in range(2):
            for T in range(8):
                rd = [("tr", "W", T & 3, (16 * m + 4 * tt) * 512 + (T >> 2) * 256) for tt in range(2)]
                D = ("v", OACC + 16 * T) if h == 0 else ("a", 16 * T)
                g.add_op(t, rd, ("a", XA + (2 * i + m) * 4), D, i == 0 and m == 0)
    def ops_qk(g, h, j):
        for s in range(16):
            g.add_op(("K", h, j), [("b128", "K", s & 7, (s >> 3) * 256)], ("v", QF + 4 * s), ("v", S), s == 0)
    def ops_pv(g, h, j):
        for m in range(2):
            for dt in range(8):
                rd = [("tr", "V", dt & 3, (16 * m + 8 * tt) * 512 + (dt >> 2) * 256) for tt in range(2)]
                g.add_op(("V", h, j), rd, ("v", S + 8 * m), ("v", OACC + 16 * dt), j == 0 and m == 0)
    def ops_wo(g, h, grp, u, acc, zero):
        for m in range(8):
            for T in range(2):
                rd = [("tr", "W", T, (16 * m + 8 * tt) * 128) for tt in range(2)]
                ks = 8 * u + m
                B = ("a", O0P + 4 * ks) if h == 0 else ("v", QF + 4 * ks)
                g.add_op(("o", h, 2 * grp + u), rd, B, (acc[0], acc[1] + 16 * T), zero and u == 0 and m == 0)

    def softmax(g, j):
        s = lambda i: f"v{S+i}"
        a = [f"v_max3_f32 v{TA}, {s(0)}, {s(1)}, {s(2)}", f"v_max3_f32 v{TB}, {s(3)}, {s(4)}, {s(5)}",
             f"v_max3_f32 v{TA}, v{TA}, {s(6)}, {s(7)}", f"v_max3_f32 v{TB}, v{TB}, {s(8)}, {s(9)}",
             f"v_max3_f32 v{TA}, v{TA}, {s(10)}, {s(11)}", f"v_max3_f32 v{TB}, v{TB}, {s(12)}, {s(13)}",
             f"v_max3_f32 v{TA}, v{TA}, {s(14)}, {s(15)}", f"v_max_f32 v{TA}, v{TA}, v{TB}"]
        if j == 0:
            a += [f"v_mov_b32 v{TB}, v{TA}", f"v_permlane32_swap_b32 v{TA}, v{TB}", f"v_max_f32 v{M}, v{TA}, v{TB}",
                  f"v_mul_f32 v{MC}, s{sC}, v{M}", f"v_add_f32 v{THR}, s{sK0}, v{M}"]
        else:
            g.nlab += 1
            a += [[f"v_cmp_gt_f32 vcc, v{TA}, v{THR}", f"s_cbranch_vccz L_sk{g.nlab}", f"s_call_b64 s[{sRET}:{sRET+1}], L_rescale", f"L_sk{g.nlab}:"]]
        def half(m):
            o = []
            b = 8 * m
            for i in range(8): o.append(("f", f"v_fma_f32 {s(b+i)}, {s(b+i)}, s{sC}, -v{MC}"))
            e = [f"v_exp_f32 {s(b+i)}, {s(b+i)}" for i in range(8)]
            ad = []
            for i in range(8):
                l = LA if i % 2 == 0 else LB
                if j == 0 and m == 0 and i < 2: ad.append(f"v_mov_b32 v{l}, {s(b+i)}")
                else: ad.append(f"v_add_f32 v{l}, v{l}, {s(b+i)}")
            cv = [f"v_cvt_pk_bf16_f32 {s(b+i)}, {s(b+2*i)}, {s(b+2*i+1)}" for i in range(4)]
            f = [x[1] for x in o]
            seq = [f[0], f[1], e[0], f[2], e[1], f[3], e[2], ad[0], f[4], e[3], ad[1], f[5], e[4], ad[2], cv[0], f[6], e[5], ad[3], f[7], e[6], ad[4],
                   cv[1], e[7], ad[5], ad[6], cv[2], ad[7], cv[3]]
            return seq
        return a + half(0), half(1)

    def finish_l(g, dst):
        return [f"v_add_f32 v{LA}, v{LA}, v{LB}", f"v_mov_b32 v{LB}, v{LA}", f"v_permlane32_swap_b32 v{LA}, v{LB}",
                f"v_add_f32 v{LA}, v{LA}, v{LB}", f"v_rcp_f32 v{dst}, v{LA}"]

    def lane_setup_wo(g):
        d = [f"v_mbcnt_lo_u32_b32 v{T0}, -1, 0", f"v_mbcnt_hi_u32_b32 v{T0}, -1, v{T0}",
             f"v_lshrrev_b32 v{T1}, 2, v{T0}", f"v_and_b32 v{T1}, 4, v{T1}", f"v_xor_b32 v{T1}, v{T0}, v{T1}", f"v_and_b32 v{T1}, 7, v{T1}",
             f"v_lshlrev_b32 v{T1}, 4, v{T1}", f"v_lshrrev_b32 v{WD}, 3, v{T0}", f"v_mul_u32_u24 v{WD}, 896, v{WD}", f"v_add_u32 v{WD}, v{WD}, v{T1}",
             f"v_add_u32 v{WD+1}, {8*896-1024}, v{WD}"]
        r = [f"v_mbcnt_lo_u32_b32 v{T0}, -1, 0", f"v_mbcnt_hi_u32_b32 v{T0}, -1, v{T0}",
             f"v_lshrrev_b32 v{WA}, 5, v{T0}", f"v_lshlrev_b32 v{WA}, 9, v{WA}",
             f"v_and_b32 v{T1}, 12, v{T0}", f"v_lshl_add_u32 v{WA}, v{T1}, 5, v{WA}",
             f"v_and_b32 v{T1}, 8, v{T0}", f"v_lshl_add_u32 v{WA}, v{T1}, 3, v{WA}",
             f"v_and_b32 v{T1}, 16, v{T0}", f"v_lshl_add_u32 v{WA}, v{T1}, 1, v{WA}",
             f"v_and_b32 v{T1}, 3, v{T0}", f"v_lshl_add_u32 v{WA}, v{T1}, 3, v{WA}",
             f"v_xor_b32 v{WA+1}, 64, v{WA}"]
        return d, r

    def store_setup(g):
        return [f"v_mbcnt_lo_u32_b32 v{T0}, -1, 0", f"v_mbcnt_hi_u32_b32 v{T0}, -1, v{T0}",
                f"v_and_b32 v{T1}, 31, v{T0}", f"s_lshl_b32 s{sT+24}, s{sWV}, 5", f"v_add_u32 v{T1}, s{sT+24}, v{T1}",
                f"v_lshrrev_b32 v{T0}, 5, v{T0}", f"v_lshlrev_b32 v{T0}, 4, v{T0}", f"v_lshl_add_u32 v{XV}, v{T1}, 5, v{T0}",
                [f"v_cmp_lt_u32 vcc, 111, v{T1}", f"v_bfrev_b32 v{T0}, 1", "s_nop 0", f"v_cndmask_b32 v{XV}, v{XV}, v{T0}, vcc"]]

    def build_program(g):
        for i in range(14):
            g.begin_step([("q", 0, i)], xneed=[2 * i, 2 * i + 1], name=f"wq0_{i}")
            g.ops_wq(0, i)
        g.stores = {}
        seq = [6, 5, 0, 1, 2, 3, 4]
        for h in range(2):
            for j in range(16):
                W = None
                if h == 0 and j < 14: W = ("q", 1, j)
                if h == 1 and 1 <= j < 15: W = ("o", 0, j - 1)
                g.begin_step([("K", h, j), ("V", h, j)] + ([W] if W else []), name=f"a{h}_{j}")
                p_qk = len(g.ops)
                g.ops_qk(h, j)
                p_w = len(g.ops)
                if W and h == 0: g.ops_wq(1, j)
                if W and h == 1:
                    grp, u = (j - 1) >> 1, (j - 1) & 1
                    g.ops_wo(0, grp, u, ("a", OB[grp & 1]), True)
                p_pv = len(g.ops)
                g.ops_pv(h, j)
                p_end = len(g.ops)
                if h == 0 and j == 0:
                    for T in range(8):
                        cv = [f"v_cvt_pk_bf16_f32 v{QF+8*T+e}, v{OACC+16*T+2*e}, v{OACC+16*T+2*e+1}" for e in range(8)]
                        p = p_qk - 4 + (3 * T) // 2
                        g.spread(cv, p, p + 1)
                if h == 1 and j == 0:
                    for dt in range(8):
                        o = []
                        for e in range(8):
                            b = OACC + 16 * dt + 2 * e
                            o += [f"v_mul_f32 v{b}, v{b}, v{XV}", f"v_mul_f32 v{b+1}, v{b+1}, v{XV}"]
                        for e in range(8):
                            b = OACC + 16 * dt + 2 * e
                            o += [f"v_cvt_pk_bf16_f32 v{b}, v{b}, v{b+1}"]
                        for e in range(8):
                            b = OACC + 16 * dt + 2 * e
                            o += [f"v_accvgpr_write_b32 a{O0P+8*dt+e}, v{b}"]
                        g.spread(o, p_qk + 2 * dt + 1, p_qk + 2 * dt + 2)
                pa, pb = g.softmax(j)
                if W:
                    g.spread(pa + pb, p_w + 2, p_pv + 3) if False else None
                    n_a = len(pa)
                    g.spread(pa, p_w + 2, p_pv - 4)
                    g.spread(pb, p_pv - 3, p_pv + 6)
                else:
                    g.spread(pa, p_pv, p_pv)
                    g.spread(pb, p_pv + 1, p_pv + 7)
                if j == 15:
                    g.spread(g.finish_l(XV if h == 0 else THR), p_pv + 9, p_pv + 11)
                if h == 0 and j == 15:
                    for T in range(8):
                        o = []
                        for e in range(8):
                            d = QF + 8 * T + e; t = T0 if e % 2 == 0 else T1
                            o += [f"v_accvgpr_read_b32 v{d}, a{16*T+2*e}", f"v_accvgpr_read_b32 v{t}, a{16*T+2*e+1}", f"v_cvt_pk_bf16_f32 v{d}, v{d}, v{t}"]
                        p = p_pv + 8 + 2 * T
                        g.spread(o, p, p + 1)
                if h == 0 and j == 14:
                    g.wo_setup_pos = (p_qk + 2, p_pv + 4)
                if h == 1 and j >= 3 and j % 2 == 1 and (j - 3) // 2 <= 4:
                    grp = (j - 3) // 2
                    o = []
                    for e in range(16):
                        a0 = OB[grp & 1] + 2 * e
                        o += [f"v_accvgpr_read_b32 v{T0}, a{a0}", f"v_accvgpr_read_b32 v{T1}, a{a0+1}", f"v_cvt_pk_bf16_f32 v{T0}, v{T0}, v{T1}",
                              f"v_accvgpr_write_b32 a{PP+16*grp+e}, v{T0}"]
                    g.spread(o, p_qk + 1, p_qk + 15)
                if h == 1 and j == 2:
                    g.spread(g.store_setup(), p_qk + 1, p_qk + 10)
                if h == 1 and j == 15:
                    g.p_last_pv = p_pv
        vb = {0: 0, 1: 32, 2: 96, 3: 64, 4: 0}
        stg = {6: 96, 5: 64}
        pos = []
        for k, grp in enumerate(seq):
            acc = ("a", OB[grp & 1]) if grp >= 5 else ("v", vb[grp])
            pos.append(len(g.ops))
            for u in range(2):
                g.begin_step([("o", 1, 2 * grp + u)], name=f"wo1_{grp}_{u}")
                g.ops_wo(1, grp, u, acc, False)
        pos.append(len(g.ops))
        for dt in range(8):
            o = []
            for half in range(2):
                for e in range(4 * half, 4 * half + 4):
                    b = OACC + 16 * dt + 2 * e
                    o += [f"v_mul_f32 v{b}, v{b}, v{THR}", f"v_mul_f32 v{b+1}, v{b+1}, v{THR}"]
                for e in range(4 * half, 4 * half + 4):
                    b = OACC + 16 * dt + 2 * e
                    o += [f"v_cvt_pk_bf16_f32 v{QF+8*dt+e}, v{b}, v{b+1}"]
            p = pos[0] - 4 + 4 * dt - (dt > 0) * 1
            g.spread(o, p, p + 3)
        for k, grp in enumerate(seq):
            if grp < 5:
                o = []
                for e in range(16):
                    d = vb[grp] + 2 * e
                    o += [f"v_accvgpr_read_b32 v{d+1}, a{PP+16*grp+e}", f"v_lshlrev_b32 v{d}, 16, v{d+1}", f"v_and_b32 v{d+1}, 0xffff0000, v{d+1}"]
                g.spread(o, pos[k - 1] + 16, pos[k] - 1)
            o = []
            base = stg[grp] if grp >= 5 else vb[grp]
            for T in range(2):
                for half in range(2):
                    for e in range(4 * half, 4 * half + 4):
                        b = base + 16 * T + 2 * e
                        if grp >= 5:
                            a0 = OB[grp & 1] + 16 * T + 2 * e
                            o += [f"v_accvgpr_read_b32 v{b}, a{a0}", f"v_accvgpr_read_b32 v{b+1}, a{a0+1}"]
                        o += [f"v_cvt_pk_bf16_f32 v{base+16*T+e}, v{b}, v{b+1}"]
                    th = (2 * grp + T) * 2 + half
                    o += [[f"s_add_u32 s{sT+25}, s{sST}, {th*3584}",
                           f"@VM buffer_store_dwordx4 {R('v', base+16*T+4*half, 4)}, v{XV}, s[{sWS}:{sWS+3}], s{sT+25} offen {g.stpol}".rstrip()]]
            p0 = pos[k + 1] + (2 if k + 1 < len(seq) else 0)
            g.spread(o, p0, p0 + 13 if k + 1 < len(seq) else p0)
        d, r = g.lane_setup_wo()
        g.wo_d, g.wo_r = d, r

    def schedule_dma(g):
        steps = g.steps
        need_at = {t: n for n, s in enumerate(steps) for t in s["tiles"]}
        q = {c: [t for s in steps for t in s["tiles"] if (t[0] if t[0] in "KV" else "W") == c] for c in "KVW"}
        free = set(range(10)); where = {}
        plan = {}
        credit = g.kv0
        def allowed(c, n):
            if c == "K": return [0, 1, 2, 3]
            if c == "V":
                return [4, 5] if any(t[:2] == ("q", 0) for t in q["W"]) else [4, 5, 6]
            s = [7, 8, 9]
            if q["W"] and q["W"][0][:2] == ("q", 0): s = [7, 8, 9, 6]
            if not q["V"]: s = s + [6, 5, 4]
            if not q["K"]: s = s + [3, 2, 1, 0]
            return s
        for n in range(-1, len(steps)):
            if n >= 1:
                for t in steps[n - 1]["tiles"]: free.add(where[t])
            if 0 <= n < 14: credit += g.pace
            L = []
            while True:
                cands = []
                for c in "WKV":
                    if not q[c]: continue
                    sl = [s for s in allowed(c, n) if s in free]
                    if not sl: continue
                    if c in "KV" and n < 14 and credit < 1: continue
                    cands.append((need_at[q[c][0]], "WKV".index(c), c, sl[0]))
                if not cands: break
                _, _, c, sl = min(cands)
                t = q[c].pop(0); where[t] = sl; free.discard(sl); L.append(t)
                if c in "KV" and n < 14: credit -= 1
            plan[n] = L
        g.plan, g.where = plan, where

    def dma_pieces(g, t):
        ty, h, i = t
        slot = g.where[t]
        P = []
        for k in range(4):
            L = []
            if k == 0:
                L.append(f"s_add_u32 m0, s{sLW}, {slot*16384}")
                if ty in "KV": L.append(f"s_add_u32 s{sT}, s{sKV}, {h*262144 + i*16384}")
                elif ty == "q":
                    L.append(f"s_lshl_b32 s{sT}, s{sRHO+i}, 12"); L.append(f"s_add_u32 s{sT}, s{sT}, s{sWQB}")
                    if h: L.append(f"s_add_u32 s{sT}, s{sT}, 512")
                else:
                    L.append(f"s_add_u32 s{sT}, s{sWOB}, {(h*256 + 128*(i&1))*896 + (i>>1)*128}")
            if k == 2:
                L.append(f"s_add_u32 m0, m0, 8192")
                L.append(f"s_add_u32 s{sT}, s{sT}, {8192 if ty in 'KV' else (16*8192 if ty == 'q' else 64*896)}")
            v = {"K": KD, "V": VD, "q": WD, "o": WD}[ty] + (k & 1)
            srd = {"K": sK, "V": sV, "q": sWQ, "o": sWO}[ty]
            pol = g.kvpol if ty in "KV" else g.wpol
            L.append(f"buffer_load_dwordx4 v{v}, s[{srd}:{srd+3}], s{sT} offen offset:{(k&1)*1024} {pol} lds".replace("  ", " "))
            P.append((L, (t, k)))
        return P
    def x_load(g, ks):
        return ([f"buffer_load_dwordx4 {R('a', XA+4*ks, 4)}, v{XV}, s[{sX}:{sX+3}], s{sRHO+(ks>>1)} offen offset:{(ks&1)*32} {g.xpol}".rstrip()], ("x", ks))

    def prologue(g):
        A = g.A
        A("s_cmp_ge_u32 s2, 256"); A("s_cbranch_scc1 L_end")
        if g.stamps: A(f"s_memrealtime s[{sSTAMP}:{sSTAMP+1}]")
        A("s_lshr_b32 s4, s2, 7")
        A("s_mul_i32 s7, s4, 40")
        A("s_add_u32 s4, s0, s7"); A("s_addc_u32 s5, s1, 0")
        A("s_load_dwordx4 s[84:87], s[4:5], 0")
        A("s_load_dwordx4 s[88:91], s[4:5], 16")
        A("s_load_dwordx2 s[92:93], s[4:5], 32")
        A("s_load_dwordx2 s[94:95], s[0:1], 96")
        A("s_and_b32 s3, s2, 7")
        A("s_bfe_u32 s6, s2, 0x40003")
        A("v_lshrrev_b32 v1, 6, v0"); A(f"v_readfirstlane_b32 s{sWV}, v1")
        A("v_and_b32 v2, 63, v0")
        A("v_lshrrev_b32 v3, 5, v2")
        A("v_and_b32 v4, 31, v2")
        A(f"s_lshl_b32 s{sLW}, s{sWV}, 11")
        A(f"s_lshl_b32 s{sKV}, s6, 22"); A("s_lshl_b32 s7, s3, 19"); A(f"s_add_u32 s{sKV}, s{sKV}, s7"); A(f"s_add_u32 s{sKV}, s{sKV}, s{sLW}")
        A(f"s_lshl_b32 s{sWQB}, s{sWV}, 15"); A("s_lshl_b32 s7, s3, 10"); A(f"s_add_u32 s{sWQB}, s{sWQB}, s7")
        A(f"s_lshl_b32 s{sWOB}, s3, 9"); A(f"s_lshl_b32 s7, s{sWV}, 4"); A(f"s_add_u32 s{sWOB}, s{sWOB}, s7"); A(f"s_mul_i32 s{sWOB}, s{sWOB}, 896")
        A(f"s_mul_i32 s{sST}, s2, 100352")
        A(f"s_mov_b32 s{sC}, {f2u(math.log2(math.e)/16.0):#x}")
        A(f"s_mov_b32 s{sK0}, {f2u(g.thr_log2*16.0/math.log2(math.e)):#x}")
        A("s_lshl_b32 s7, s6, 6" if g.rot else "s_mov_b32 s7, 0")
        for i in range(14):
            A(f"s_sub_u32 s{sRHO+i}, s7, {14*64}")
            A(f"s_cselect_b32 s{sRHO+i}, s7, s{sRHO+i}")
            if i < 13: A(f"s_add_u32 s7, s{sRHO+i}, 64")
        A(f"s_lshl_b32 s7, s{sWV}, 5"); A("v_add_u32 v5, s7, v4"); A("v_min_u32 v5, 111, v5")
        A("s_mul_i32 s7, s6, 112"); A("v_add_u32 v5, s7, v5"); A("v_mul_u32_u24 v5, 896, v5"); A(f"v_lshl_add_u32 v{XV}, v3, 4, v5")
        A("v_lshlrev_b32 v5, 2, v3"); A("v_xor_b32 v5, v4, v5"); A("v_lshlrev_b32 v5, 4, v5")
        A(f"v_lshl_add_u32 v{WD}, v3, 13, v5"); A(f"v_xor_b32 v{WD+1}, 0x80, v{WD}"); A(f"v_add_u32 v{WD+1}, {2*8192-1024}, v{WD+1}")
        A(f"v_lshl_add_u32 v{VD}, v3, 9, v5"); A(f"v_xor_b32 v{VD+1}, 0x80, v{VD}")
        A(f"s_lshl_b32 s7, s{sWV}, 2"); A("v_add_u32 v5, s7, v3"); A("v_xor_b32 v5, v4, v5"); A("v_lshlrev_b32 v5, 4, v5")
        A(f"v_lshl_add_u32 v{KD}, v3, 9, v5"); A(f"v_xor_b32 v{KD+1}, 32, v{KD}")
        A("s_waitcnt lgkmcnt(0)")
        def srd(d, src, n):
            A(f"s_mov_b32 s{d}, s{src}"); A(f"s_mov_b32 s{d+1}, s{src+1}"); A(f"s_mov_b32 s{d+2}, {n}"); A(f"s_mov_b32 s{d+3}, 0x20000")
        srd(sX, 84, 16*112*896); srd(sWQ, 90, 448*8192); srd(sK, 86, 1 << 26); srd(sV, 88, 1 << 26); srd(sWO, 92, 4096*896); srd(sWS, 94, 256*100352 + (1 << 20 if (g.stamps or g.dbg) else 0))

    def addr_setup(g):
        A = g.A
        A("v_and_b32 v5, 15, v4"); A("v_xor_b32 v5, v5, v3"); A("v_lshlrev_b32 v5, 4, v5"); A(f"v_lshl_add_u32 v{KA}, v4, 9, v5")
        for s in range(1, 8): A(f"v_xor_b32 v{KA+s}, {s<<5}, v{KA}")
        A("v_bfe_u32 v5, v2, 2, 2")
        A("v_lshlrev_b32 v6, 9, v5"); A("v_lshl_add_u32 v6, v5, 6, v6")
        A("v_and_b32 v7, 16, v2"); A("v_lshl_add_u32 v6, v7, 1, v6")
        A("v_and_b32 v7, 3, v2")
        A(f"v_lshl_add_u32 v{VA}, v7, 3, v6"); A(f"v_lshl_add_u32 v{VA}, v3, 11, v{VA}")
        for s in range(1, 4): A(f"v_xor_b32 v{VA+s}, {s<<6}, v{VA}")
        A("v_and_b32 v8, 1, v2"); A("v_lshlrev_b32 v8, 4, v8"); A("v_and_b32 v9, 2, v2"); A("v_lshl_add_u32 v8, v9, 2, v8")
        A(f"v_add_u32 v{WA}, v6, v8"); A(f"v_lshl_add_u32 v{WA}, v3, 12, v{WA}")
        for s in range(1, 4): A(f"v_xor_b32 v{WA+s}, {s<<6}, v{WA}")
        g.base = {"K": 0, "V": 0, "W": 0}

    def emit_read(g, op, fr):
        A = g.A
        slot = g.where[op["tile"]]
        for n, (kind, aset, ai, imm) in enumerate(op["reads"]):
            tgt = slot * 16384
            if not (g.base[aset] <= tgt and tgt + 16383 - g.base[aset] <= 65535):
                nb = {"K": 0, "V": 4 * 16384, "W": 6 * 16384}[aset]
                if not (nb <= tgt and tgt + 16383 - nb <= 65535): nb = (slot // 4) * 4 * 16384 if slot < 8 else 6 * 16384
                rb, cnt = {"K": (KA, 8), "V": (VA, 4), "W": (WA, g.wcnt)}[aset]
                for r in range(cnt): A(f"v_add_u32 v{rb+r}, {(nb - g.base[aset]) & 0xffffffff:#x}, v{rb+r}")
                g.base[aset] = nb
            off = tgt + imm - g.base[aset]
            ar = {"K": KA, "V": VA, "W": WA}[aset] + ai
            if kind == "b128": A(f"ds_read_b128 {R(fr[0], fr[1], 4)}, v{ar} offset:{off}")
            else: A(f"ds_read_b64_tr_b16 {R(fr[0], fr[1]+2*n, 2)}, v{ar} offset:{off}")
            g.nrd += 1
        op["rd_last"] = g.nrd - 1

    def emit_main(g):
        A = g.A
        ops, steps = g.ops, g.steps
        N = len(ops)
        g.wcnt = 4
        vm = []
        def vmit(L, key):
            for l in L: A(l)
            vm.append(key)
        def extras(t):
            if t[:2] == ("q", 0): return [g.x_load(2 * t[2]), g.x_load(2 * t[2] + 1)]
            return []
        for t in g.plan[-1]:
            for L, key in extras(t) + g.dma_pieces(t): vmit(L, key)
        g.addr_setup()
        bpos = {}
        for n, s in enumerate(steps):
            bpos[max(0, s["first"] - g.boff)] = n
        bp_of_step = {n: p for p, n in bpos.items()}
        dma_at = {}
        last_wq_pos = 0; first_wo_pos = None
        for n, s in enumerate(steps):
            P = [x for t in g.plan[n] for x in extras(t) + g.dma_pieces(t)]
            p0 = bp_of_step[n] + 1
            p1 = (bp_of_step[n + 1] - 1) if n + 1 < len(steps) else N - 1
            if len(P) <= (p1 - p0 + 1) // 2: p1 = p0 + 2 * len(P) - 1 + (p1 - p0 + 1 - 2 * len(P)) // 2
            for i, x in enumerate(P):
                p = p0 + (i * (p1 - p0 + 1)) // len(P)
                dma_at.setdefault(p, []).append(x)
                if x[1][0][0] == "q": last_wq_pos = p
                if x[1][0][0] == "o" and first_wo_pos is None: first_wo_pos = p
        assert first_wo_pos > last_wq_pos + 1, (first_wo_pos, last_wq_pos)
        g.fill.setdefault(last_wq_pos + 1, []).insert(0, g.wo_d)
        last_wq_op = max(i for i, o in enumerate(ops) if o["tile"][0] == "q")
        wo_r_pos = last_wq_op + 20
        g.nrd = 0; rd_done = -1; next_rd = 0
        stamp_i = 1
        for i in range(N + 1):
            if i in bpos:
                n = bpos[i]; s = steps[n]
                if g.stamps and s["name"] in ("wq0_0", "a0_0", "a0_8", "a1_0", "a1_8", "wo1_6_0"):
                    A(f"s_memrealtime s[{sSTAMP+2*stamp_i}:{sSTAMP+2*stamp_i+1}]"); stamp_i += 1
                keys = [(t, 3) for t in s["tiles"]] + [("x", k) for k in s["xneed"]]
                last = max(vm.index(k) for k in keys)
                cnt = min(63, len(vm) - 1 - last)
                A(f"; ---- step {n} {s['name']}")
                A(f"s_waitcnt vmcnt({cnt}) lgkmcnt(0)"); rd_done = g.nrd - 1
                A("s_barrier")
            if i == wo_r_pos:
                for l in g.wo_r: A(l)
                g.base["W"] = 0; g.wcnt = 2
            while next_rd < N and next_rd <= i + g.dist and bp_of_step[ops[next_rd]["step"]] <= i:
                g.emit_read(ops[next_rd], FR[next_rd % len(FR)]); next_rd += 1
            for L, key in dma_at.get(i, []): vmit(L, key)
            def flat(x):
                for y in x:
                    if isinstance(y, list): yield from flat(y)
                    else: yield y
            for l in flat(g.fill.get(i, [])):
                if l.startswith("@VM "): A(l[4:]); vm.append(("st", len(vm)))
                else: A(l)
            if i == N: break
            op = ops[i]
            if op["rd_last"] > rd_done:
                c = g.nrd - 1 - op["rd_last"]
                assert c <= 15
                A(f"s_waitcnt lgkmcnt({c})"); rd_done = op["rd_last"]
            fr = FR[i % len(FR)]
            D = R(op["D"][0], op["D"][1], 16)
            A(f"v_mfma_f32_32x32x16_bf16 {D}, {R(fr[0], fr[1], 4)}, {R(op['B'][0], op['B'][1], 4)}, {'0' if op['zero'] else D}")
            if g.dbg and g.dbg[0] == i: g.dump(g.dbg[1])

    def dump(g, regs):
        A = g.A
        A("s_nop 15"); A("s_nop 15")
        A(f"s_cmp_lg_u32 s2, {g.dbg[2]}"); A("s_cbranch_scc1 L_nodump")
        A(f"v_mbcnt_lo_u32_b32 v{T0}, -1, 0"); A(f"v_mbcnt_hi_u32_b32 v{T0}, -1, v{T0}"); A(f"v_lshlrev_b32 v{T0}, 2, v{T0}")
        A(f"s_mul_i32 s96, s{sWV}, {len(regs)*256}"); A(f"s_add_u32 s96, s96, {256*100352}")
        for f, r in regs:
            A(f"buffer_store_dword {f}{r}, v{T0}, s[{sWS}:{sWS+3}], s96 offen"); A("s_add_u32 s96, s96, 256")
        A("s_waitcnt vmcnt(0)")
        A("L_nodump:")

    def rescale(g):
        A = g.A
        A("L_rescale:")
        A(f"v_mov_b32 v{TB}, v{TA}"); A(f"v_permlane32_swap_b32 v{TA}, v{TB}")
        A(f"v_max3_f32 v{M}, v{TA}, v{TB}, v{M}")
        A(f"v_mul_f32 v{TA}, s{sC}, v{M}")
        A(f"v_sub_f32 v{TB}, v{MC}, v{TA}"); A(f"v_exp_f32 v{TB}, v{TB}")
        A(f"v_mov_b32 v{MC}, v{TA}"); A(f"v_add_f32 v{THR}, s{sK0}, v{M}")
        A(f"v_mul_f32 v{LA}, v{LA}, v{TB}"); A(f"v_mul_f32 v{LB}, v{LB}, v{TB}")
        for r in range(128): A(f"v_mul_f32 v{OACC+r}, v{OACC+r}, v{TB}")
        A("s_nop 1")
        A(f"s_setpc_b64 s[{sRET}:{sRET+1}]")

    def reduce_kernel(g):
        L = []; A = L.append
        A("s_cmp_ge_u32 s2, 784"); A("s_cbranch_scc1 L_rend")
        A("s_load_dwordx2 s[4:5], s[0:1], 80"); A("s_load_dwordx2 s[6:7], s[0:1], 96")
        A("v_lshrrev_b32 v1, 6, v0"); A("v_readfirstlane_b32 s3, v1")
        A("s_lshl_b32 s16, s2, 2"); A("s_add_u32 s16, s16, s3")
        A(f"s_mul_i32 s17, s16, {math.ceil(2**20/98)}"); A("s_lshr_b32 s17, s17, 20")
        A("s_mul_i32 s18, s17, 98"); A("s_sub_u32 s18, s16, s18")
        A(f"s_mul_i32 s19, s18, {math.ceil(2**16/7)}"); A("s_lshr_b32 s19, s19, 16")
        A("s_mul_i32 s20, s19, 7"); A("s_sub_u32 s20, s18, s20")
        A("v_and_b32 v2, 15, v0"); A("v_bfe_u32 v3, v0, 4, 2")
        A("v_mul_u32_u24 v4, 3584, v3"); A("v_lshl_add_u32 v4, v2, 4, v4")
        A("s_mul_i32 s21, s17, 802816"); A("s_mul_i32 s22, s20, 14336"); A("s_add_u32 s21, s21, s22"); A("s_lshl_b32 s22, s19, 8"); A("s_add_u32 s21, s21, s22")
        A("s_waitcnt lgkmcnt(0)")
        A("s_mov_b32 s8, s6"); A("s_mov_b32 s9, s7"); A(f"s_mov_b32 s10, {256*100352}"); A("s_mov_b32 s11, 0x20000")
        A("s_mov_b32 s12, s4"); A("s_mov_b32 s13, s5"); A(f"s_mov_b32 s14, {16*112*896*2}"); A("s_mov_b32 s15, 0x20000")
        for p in range(8):
            A(f"buffer_load_dwordx4 v[{8+4*p}:{11+4*p}], v4, s[8:11], s21 offen {g.rdpol}".rstrip())
            if p < 7: A("s_add_u32 s21, s21, 100352")
        A("v_lshrrev_b32 v5, 1, v2"); A("v_mul_u32_u24 v5, 1792, v5"); A("v_lshl_add_u32 v5, v3, 5, v5"); A("v_and_b32 v6, 1, v2"); A("v_lshl_add_u32 v5, v6, 3, v5")
        A("s_and_b32 s22, s17, 15"); A("s_mul_i32 s22, s22, 112"); A("s_lshl_b32 s23, s19, 3"); A("s_add_u32 s22, s22, s23"); A("s_mul_i32 s22, s22, 1792")
        A("s_lshr_b32 s23, s17, 4"); A("s_mul_i32 s23, s23, 896"); A("s_add_u32 s22, s22, s23"); A("s_lshl_b32 s23, s20, 7"); A("s_add_u32 s22, s22, s23")
        for p in range(8):
            A(f"s_waitcnt vmcnt({7-p})")
            for d in range(4):
                src = 8 + 4 * p + d
                if p == 0:
                    A(f"v_lshlrev_b32 v{40+2*d}, 16, v{src}"); A(f"v_and_b32 v{41+2*d}, 0xffff0000, v{src}")
                else:
                    A(f"v_lshlrev_b32 v6, 16, v{src}"); A(f"v_and_b32 v7, 0xffff0000, v{src}")
                    A(f"v_add_f32 v{40+2*d}, v{40+2*d}, v6"); A(f"v_add_f32 v{41+2*d}, v{41+2*d}, v7")
        for d in range(4): A(f"v_cvt_pk_bf16_f32 v{48+d}, v{40+2*d}, v{41+2*d}")
        A("buffer_store_dwordx2 v[48:49], v5, s[12:15], s22 offen")
        A("buffer_store_dwordx2 v[50:51], v5, s[12:15], s22 offen offset:16")
        A("L_rend:"); A("s_endpgm")
        return fix_hazards(L)[0]

    def generate(g):
        g.build_program(); g.schedule_dma()
        g.prologue(); g.emit_main()
        A = g.A
        if g.stamps:
            A("s_waitcnt vmcnt(0)")
            A(f"s_memrealtime s[{sSTAMP+14}:{sSTAMP+15}]"); A("s_waitcnt lgkmcnt(0)")
            for i in range(8): A(f"v_mov_b32 v{i}, s{sSTAMP+2*i}")
            A(f"s_lshl_b32 s3, s2, 5"); A(f"s_add_u32 s3, s3, {256*100352}"); A("v_mov_b32 v8, 0")
            A(f"s_cmp_lg_u32 s{sWV}, 0"); A("s_cbranch_scc1 L_end")
            A(f"buffer_store_dwordx4 v[0:3], v8, s[{sWS}:{sWS+3}], s3 offen"); A(f"buffer_store_dwordx4 v[4:7], v8, s[{sWS}:{sWS+3}], s3 offen offset:16")
        A("L_end:"); A("s_endpgm")
        g.rescale()
        body, nops = fix_hazards(g.L)
        g.nops = nops
        hdr = open("cdna_kernels/" + NAME + ".s.ref").read().split("; Override launch")[0]
        o = [hdr.rstrip()]
        o.append(f"; @launch kernel={NAME}_kernel grid=(256,1,1) block=(256,1,1) lds=163840")
        o.append(f"; @launch kernel=reduce_kernel grid=(784,1,1) block=(256,1,1) lds=0")
        o += ['.amdgcn_target "amdgcn-amd-amdhsa--gfx950"', ".text", ".globl reduce_kernel", ".p2align 8", ".type reduce_kernel,@function", "reduce_kernel:"]
        o += g.reduce_kernel()
        o += [f".globl {NAME}_kernel", ".p2align 8", f".type {NAME}_kernel,@function", f"{NAME}_kernel:"]
        o += body
        def kd(n, v, acc, s):
            return [".p2align 6", f".amdhsa_kernel {n}", f"  .amdhsa_next_free_vgpr {v}", f"  .amdhsa_next_free_sgpr {s}", f"  .amdhsa_accum_offset {acc}",
                    "  .amdhsa_group_segment_fixed_size 0", "  .amdhsa_kernarg_size 104", "  .amdhsa_user_sgpr_count 2",
                    "  .amdhsa_user_sgpr_kernarg_segment_ptr 1", "  .amdhsa_system_sgpr_workgroup_id_x 1", ".end_amdhsa_kernel"]
        o += ['.section .rodata,"a"'] + kd(NAME + "_kernel", 512, 256, 102) + kd("reduce_kernel", 56, 56, 32)
        return "\n".join(o) + "\n"

if __name__ == "__main__":
    out = sys.argv[1] if len(sys.argv) > 1 else "k.s"
    kw = {}
    for a in sys.argv[2:]:
        k, v = a.split("=", 1)
        try: v = eval(v)
        except Exception: pass
        kw[k] = v
    g = Gen(**kw)
    txt = g.generate()
    open(out, "w").write(txt)
    print(out, "bytes", len(txt), "lines", txt.count("\n"), "nops", g.nops)
    if "-v" in sys.argv[0:1] or kw.get("stamps"):
        for n in range(-1, len(g.steps)): print(n, g.steps[n]["name"] if n >= 0 else "pro", [("".join(map(str, t)), g.where[t]) for t in g.plan[n]])
```

```python
import sys, math, struct
from asmlib import fix_hazards
NAME = "concat_heads__mha_block_cached__gqa_block_cached__near_ridge"

def f2u(x): return struct.unpack("<I", struct.pack("<f", x))[0]

OACC = 0; QF = 128; S = 192; P = 208
FR = [("v", 216), ("a", 240), ("a", 244), ("v", 220), ("a", 248), ("a", 252)]
KA = 224; VA = 232; WA = 236
KD = 240; VD = 242; WD = 244
XV = 246; MC = 247; THR = 248; M = 249; LA = 250; LB = 251; TA = 252; TB = 253; T0 = 254; T1 = 255
XD = S; XR = S + 4
XA = 128
O0P = 128
PP = 192
AB = {0: 0, 1: 32, 2: 64, 3: 96, 4: 0, 5: 32, 6: 64}
sK, sV, sWQ, sWO, sX, sWS = 8, 12, 16, 20, 24, 28
sKV, sLW, sWQB, sWOB, sT, sC, sK0, sST = 32, 33, 34, 35, 36, 37, 38, 39
sRHO = 40
sLX = 48; sFLAG = 49
sRET = 56
sWV = 58; sT2 = 60; sT3 = 61
sSTAMP = 64

def R(f, b, n=1): return f"{f}{b}" if n == 1 else f"{f}[{b}:{b+n-1}]"
def flat(x):
    for y in x:
        if isinstance(y, list): yield from flat(y)
        else: yield y
def cost(ins):
    c = 0
    for l in flat([ins]):
        if l.endswith(":"): continue
        c += 2 if l.startswith(("v_exp", "v_rcp")) else (0 if l.startswith("s_call") else 1)
    return c

class Gen:
    def __init__(g, kvpol="nt", wpol="nt", xpol="nt", stpol="", dist=4, boff=3, stamps=False, pace=0.5, kv0=0, rot=True,
                 thr_log2=8.0, dbg=None, rdpol="", cst=None, nowait=False, nodma=False, pair=True, cpf=True, qkw=2.0, wo1g=2, wslots0=4, xc=(0, 2, 3, 4, 5, 6, 7), npro=4, xslots=(5, 4, 3)):
        g.__dict__.update(locals()); del g.__dict__["g"]
        g.L = []
        g.ops = []; g.steps = []; g.fill = {}; g.streams = []
        g.nlab = 0

    def A(g, t): g.L.append(t)

    def add_op(g, tile, reads, B, D, zero):
        g.ops.append(dict(tile=tile, reads=reads, B=B, D=D, zero=zero, step=len(g.steps) - 1))
    def begin_step(g, tiles, name=""):
        g.steps.append(dict(tiles=tiles, first=len(g.ops), name=name))
    def spread(g, instrs, p0, p1):
        g.streams.append((instrs, p0, p1))

    def ops_wq(g, h, i):
        t = ("q", h, i)
        for m in range(2):
            for T in range(8):
                rd = [("tr", "W", T & 3, (16 * m + 4 * tt) * 512 + (T >> 2) * 256) for tt in range(2)]
                D = ("v", OACC + 16 * T) if h == 0 else ("a", 16 * T)
                g.add_op(t, rd, ("a", XA + (2 * i + m) * 4), D, i == 0 and m == 0)
    def ops_qk(g, h, j):
        for s in range(16):
            g.add_op(("K", h, j), [("b128", "K", s & 7, (s >> 3) * 256)], ("v", QF + 4 * s), ("v", S), s == 0)
    def ops_pv(g, h, j):
        for m in range(2):
            for dt in range(8):
                rd = [("tr", "V", dt & 3, (16 * m + 8 * tt) * 512 + (dt >> 2) * 256) for tt in range(2)]
                g.add_op(("V", h, j), rd, ("v", P + 4 * m), ("v", OACC + 16 * dt), j == 0 and m == 0)
    def ops_wo(g, h, grp, u, acc, zero):
        for m in range(8):
            for T in range(2):
                rd = [("tr", "W", T, (16 * m + 8 * tt) * 128) for tt in range(2)]
                ks = 8 * u + m
                B = ("a", O0P + 4 * ks) if h == 0 else ("v", QF + 4 * ks)
                g.add_op(("o", h, 2 * grp + u), rd, B, (acc[0], acc[1] + 16 * T), zero and u == 0 and m == 0)

    def softmax(g, j):
        s = lambda i: f"v{S+i}"
        a = [f"v_max3_f32 v{TA}, {s(0)}, {s(1)}, {s(2)}", f"v_max3_f32 v{TB}, {s(3)}, {s(4)}, {s(5)}",
             f"v_max3_f32 v{TA}, v{TA}, {s(6)}, {s(7)}", f"v_max3_f32 v{TB}, v{TB}, {s(8)}, {s(9)}",
             f"v_max3_f32 v{TA}, v{TA}, {s(10)}, {s(11)}", f"v_max3_f32 v{TB}, v{TB}, {s(12)}, {s(13)}",
             f"v_max3_f32 v{TA}, v{TA}, {s(14)}, {s(15)}", f"v_max_f32 v{TA}, v{TA}, v{TB}"]
        if j == 0:
            a += [f"v_mov_b32 v{TB}, v{TA}", f"v_permlane32_swap_b32 v{TA}, v{TB}", f"v_max_f32 v{M}, v{TA}, v{TB}",
                  f"v_mul_f32 v{MC}, s{sC}, v{M}", f"v_add_f32 v{THR}, s{sK0}, v{M}"]
        else:
            g.nlab += 1
            a += [[f"v_cmp_gt_f32 vcc, v{TA}, v{THR}", f"s_cbranch_vccnz L_ra{g.nlab}", f"L_rb{g.nlab}:"]]
            g.stubs.append((f"L_ra{g.nlab}", "L_newmax", f"L_rb{g.nlab}"))
        f = [f"v_fma_f32 {s(i)}, {s(i)}, s{sC}, -v{MC}" for i in range(16)]
        e = [f"v_exp_f32 {s(i)}, {s(i)}" for i in range(16)]
        ad = []
        for i in range(16):
            l = LA if i % 2 == 0 else LB
            ad.append(f"v_mov_b32 v{l}, {s(i)}" if (j == 0 and i < 2) else f"v_add_f32 v{l}, v{l}, {s(i)}")
        seq = [f[0], f[1]]
        for i in range(16):
            seq.append(e[i])
            if i + 2 < 16: seq.append(f[i + 2])
            if i >= 1: seq.append(ad[i - 1])
        seq.append(ad[15])
        cv = [f"v_cvt_pk_bf16_f32 v{P+i}, {s(2*i)}, {s(2*i+1)}" for i in range(8)]
        return a + seq, cv

    def finish_l(g, dst):
        return [f"v_add_f32 v{LA}, v{LA}, v{LB}", f"v_mov_b32 v{LB}, v{LA}", f"v_permlane32_swap_b32 v{LA}, v{LB}",
                f"v_add_f32 v{LA}, v{LA}, v{LB}", f"v_rcp_f32 v{dst}, v{LA}"]

    def lane_setup_wo(g):
        d = [f"v_mbcnt_lo_u32_b32 v{T0}, -1, 0", f"v_mbcnt_hi_u32_b32 v{T0}, -1, v{T0}",
             f"v_lshrrev_b32 v{T1}, 2, v{T0}", f"v_and_b32 v{T1}, 4, v{T1}", f"v_xor_b32 v{T1}, v{T0}, v{T1}", f"v_and_b32 v{T1}, 7, v{T1}",
             f"v_lshlrev_b32 v{T1}, 4, v{T1}", f"v_lshrrev_b32 v{WD}, 3, v{T0}", f"v_mul_u32_u24 v{WD}, 896, v{WD}", f"v_add_u32 v{WD}, v{WD}, v{T1}",
             f"v_add_u32 v{WD+1}, {8*896-1024}, v{WD}"]
        r = [f"v_mbcnt_lo_u32_b32 v{T0}, -1, 0", f"v_mbcnt_hi_u32_b32 v{T0}, -1, v{T0}",
             f"v_lshrrev_b32 v{WA}, 5, v{T0}", f"v_lshlrev_b32 v{WA}, 9, v{WA}",
             f"v_and_b32 v{T1}, 12, v{T0}", f"v_lshl_add_u32 v{WA}, v{T1}, 5, v{WA}",
             f"v_and_b32 v{T1}, 8, v{T0}", f"v_lshl_add_u32 v{WA}, v{T1}, 3, v{WA}",
             f"v_and_b32 v{T1}, 16, v{T0}", f"v_lshl_add_u32 v{WA}, v{T1}, 1, v{WA}",
             f"v_and_b32 v{T1}, 3, v{T0}", f"v_lshl_add_u32 v{WA}, v{T1}, 3, v{WA}",
             f"v_xor_b32 v{WA+1}, 64, v{WA}"]
        return d, r

    def store_setup(g):
        return [f"v_mbcnt_lo_u32_b32 v{T0}, -1, 0", f"v_mbcnt_hi_u32_b32 v{T0}, -1, v{T0}",
                f"v_and_b32 v{T1}, 31, v{T0}", f"s_lshl_b32 s{sT2}, s{sWV}, 5", f"v_add_u32 v{T1}, s{sT2}, v{T1}",
                f"v_lshrrev_b32 v{T0}, 5, v{T0}", f"v_lshlrev_b32 v{T0}, 4, v{T0}", f"v_lshl_add_u32 v{XV}, v{T1}, 5, v{T0}",
                [f"v_cmp_lt_u32 vcc, 111, v{T1}", f"v_bfrev_b32 v{T0}, 1", "s_nop 0", f"v_cndmask_b32 v{XV}, v{XV}, v{T0}, vcc"]]

    def build_program(g):
        g.stubs = []
        for i in range(14):
            g.begin_step([("q", 0, i)] + [("x", 0, u) for u in range(7) if g.xc[u] == i], name=f"wq0_{i}")
            g.ops_wq(0, i)
        seg = {}
        for t in range(33):
            h, j = t >> 4, t & 15
            hp, jp = (t - 1) >> 4, (t - 1) & 15
            W = None
            if t < 14: W = ("q", 1, t)
            if 17 <= t < 31: W = ("o", 0, t - 17)
            tiles = ([("K", h, j)] if t < 32 else []) + ([("V", hp, jp)] if t >= 1 else []) + ([W] if W else [])
            g.begin_step(tiles, name=f"a{t}")
            p_qk = len(g.ops)
            if t < 32: g.ops_qk(h, j)
            p_pv = len(g.ops)
            if t >= 1: g.ops_pv(hp, jp)
            p_w = len(g.ops)
            if W and t < 14: g.ops_wq(1, t)
            if W and t >= 17:
                grp, u = (t - 17) >> 1, (t - 17) & 1
                g.ops_wo(0, grp, u, ("a", AB[grp]), True)
            seg[t] = (p_qk, p_pv, p_w, len(g.ops))
        g.seg = seg
        for t in range(33):
            p_qk, p_pv, p_w, p_end = seg[t]
            j = t & 15
            if t == 0:
                for T in range(8):
                    cv = [f"v_cvt_pk_bf16_f32 v{QF+8*T+e}, v{OACC+16*T+2*e}, v{OACC+16*T+2*e+1}" for e in range(8)]
                    p = p_qk - 4 + (3 * T) // 2
                    g.spread(cv, p, p + 1)
            if t < 32:
                body, cv = g.softmax(j)
                tail = []
                if j == 15: tail = g.finish_l(XV if t == 15 else THR)
                if j != 0:
                    g.nlab += 1
                    g.fill.setdefault(p_w, []).append([f"s_cmp_lg_u32 s{sFLAG}, 0", f"s_cbranch_scc1 L_ra{g.nlab}", f"L_rb{g.nlab}:"])
                    g.stubs.append((f"L_ra{g.nlab}", "L_rescale", f"L_rb{g.nlab}"))
                if p_end > p_w and p_w > p_pv:
                    g.spread(body, p_pv + 2, p_end - 4); g.spread(cv + tail, p_end - 3, p_end)
                elif p_end > p_pv:
                    if p_w > p_pv:
                        g.spread(body, p_pv + 2, p_end - 1); g.spread(cv + tail, p_end, p_end)
                    else:
                        g.spread(body, p_pv + 2, p_end - 2); g.spread(cv + tail, p_end - 1, p_end)
            if t == 15:
                for T in range(8):
                    o = []
                    for e in range(8):
                        d = QF + 8 * T + e; tt = T0 if e % 2 == 0 else T1
                        o += [f"v_accvgpr_read_b32 v{d}, a{16*T+2*e}", f"v_accvgpr_read_b32 v{tt}, a{16*T+2*e+1}", f"v_cvt_pk_bf16_f32 v{d}, v{d}, v{tt}"]
                    p = p_pv + 1 + (7 * T) // 2
                    g.spread(o, p, p + 2)
            if t == 16:
                nq, npv = seg[17][0], seg[17][1]
                for dt in range(8):
                    o = []
                    for e in range(8):
                        b = OACC + 16 * dt + 2 * e
                        o += [f"v_mul_f32 v{b}, v{b}, v{XV}", f"v_mul_f32 v{b+1}, v{b+1}, v{XV}"]
                    for e in range(8):
                        b = OACC + 16 * dt + 2 * e
                        o += [f"v_cvt_pk_bf16_f32 v{b}, v{b}, v{b+1}"]
                    for e in range(8):
                        b = OACC + 16 * dt + 2 * e
                        o += [f"v_accvgpr_write_b32 a{O0P+8*dt+e}, v{b}"]
                    g.spread(o, nq + 1 + 2 * dt, nq + 2 + 2 * dt)
            if t in (19, 21, 23):
                grp = (t - 19) // 2
                o = []
                for e in range(16):
                    a0 = AB[grp] + 2 * e
                    o += [f"v_accvgpr_read_b32 v{T0}, a{a0}", f"v_accvgpr_read_b32 v{T1}, a{a0+1}", f"v_cvt_pk_bf16_f32 v{T0}, v{T0}, v{T1}",
                          f"v_accvgpr_write_b32 a{PP+16*grp+e}, v{T0}"]
                g.spread(o[:32], p_qk + 2, p_qk + 15)
                g.spread(o[32:], seg[t + 1][0] + 1, seg[t + 1][0] + 15)
            if t == 26:
                g.spread(g.store_setup(), p_qk + 1, p_qk + 12)
        p_last_pv = seg[32][1]
        seq = [6, 5, 0, 4, 1, 3, 2]
        vb = {0: 0, 1: 32, 2: 0}
        stg = {6: 96, 5: 64, 4: 96, 3: 64}
        pos = []
        cnt = 0
        for k, grp in enumerate(seq):
            acc = ("a", AB[grp]) if grp >= 3 else ("v", vb[grp])
            pos.append(len(g.ops))
            for u in range(2):
                if cnt % g.wo1g == 0: g.begin_step([], name=f"wo1_{grp}_{u}")
                cnt += 1
                g.steps[-1]["tiles"].append(("o", 1, 2 * grp + u))
                g.ops_wo(1, grp, u, acc, False)
        pos.append(len(g.ops))
        for dt in range(8):
            o = []
            for half in range(2):
                for e in range(4 * half, 4 * half + 4):
                    b = OACC + 16 * dt + 2 * e
                    o += [f"v_mul_f32 v{b}, v{b}, v{THR}", f"v_mul_f32 v{b+1}, v{b+1}, v{THR}"]
                for e in range(4 * half, 4 * half + 4):
                    b = OACC + 16 * dt + 2 * e
                    o += [f"v_cvt_pk_bf16_f32 v{QF+8*dt+e}, v{b}, v{b+1}"]
            p = pos[0] - 5 + 4 * dt + (1 if dt > 2 else 0)
            g.spread(o, p, p + 3)
        for k, grp in enumerate(seq):
            o = []
            base = stg[grp] if grp >= 3 else vb[grp]
            for T in range(2):
                for half in range(2):
                    for e in range(4 * half, 4 * half + 4):
                        b = base + 16 * T + 2 * e
                        if grp >= 3:
                            a0 = AB[grp] + 16 * T + 2 * e
                            o += [f"v_accvgpr_read_b32 v{b}, a{a0}", f"v_accvgpr_read_b32 v{b+1}, a{a0+1}"]
                        o += [f"v_cvt_pk_bf16_f32 v{base+16*T+e}, v{b}, v{b+1}"]
                    th = (2 * grp + T) * 2 + half
                    o += [[f"s_add_u32 s{sT3}, s{sST}, {th*3584}",
                           f"@VM buffer_store_dwordx4 {R('v', base+16*T+4*half, 4)}, v{XV}, s[{sWS}:{sWS+3}], s{sT3} offen {g.stpol}".rstrip()]]
            if k + 1 < len(seq):
                nxt2 = seq[k + 2] if k + 2 < len(seq) else None
                if nxt2 is not None and nxt2 < 3:
                    for e in range(16):
                        d = vb[nxt2] + 2 * e
                        o += [f"v_accvgpr_read_b32 v{d+1}, a{PP+16*nxt2+e}", f"v_lshlrev_b32 v{d}, 16, v{d+1}", f"v_and_b32 v{d+1}, 0xffff0000, v{d+1}"]
                g.spread(o, pos[k + 1] + 2, pos[k + 2] - 1)
            else:
                g.spread(o, pos[k + 1], pos[k + 1])
        g.wo_d, g.wo_r = g.lane_setup_wo()

    def schedule_dma(g):
        steps = g.steps
        need_at = {t: n for n, s in enumerate(steps) for t in s["tiles"]}
        cls = lambda t: {"K": "K", "V": "V", "x": "X"}.get(t[0], "W")
        q = {c: [t for s in steps for t in s["tiles"] if cls(t) == c] for c in "KVWX"}
        free = set(range(10)); where = {}
        plan = {}
        credit = g.kv0
        W0 = [7, 8, 9, 6][:g.wslots0]
        def allowed(c, n):
            xs = list(g.xslots) if (q["X"]) else []
            w0 = bool(q["W"]) and q["W"][0][:2] == ("q", 0)
            if c == "X": return list(g.xslots)
            if c == "K": return [s for s in [0, 1, 2, 3] if s not in xs]
            if c == "V": return [s for s in [4, 5, 6] if s not in xs and not (w0 and s in W0)]
            s = W0 if w0 else [7, 8, 9]
            if not q["V"]: s = s + [6, 5, 4]
            if not q["K"]: s = s + [3, 2, 1, 0]
            return s
        for n in range(-1, len(steps)):
            if n >= 1:
                for t in steps[n - 1]["tiles"]: free.add(where[t])
            if 0 <= n < 14: credit += g.pace
            L = []
            while True:
                if n == -1 and len(L) >= g.npro: break
                cands = []
                for c in "XWKV":
                    if not q[c]: continue
                    sl = [s for s in allowed(c, n) if s in free]
                    if not sl: continue
                    if c in "KV" and n < 14 and credit < 1: continue
                    cands.append((need_at[q[c][0]], "XWKV".index(c), c, sl[0]))
                if not cands: break
                _, _, c, sl = min(cands)
                t = q[c].pop(0); where[t] = sl; free.discard(sl); L.append(t)
                if c in "KV" and n < 14: credit -= 1
            plan[n] = L
        g.plan, g.where = plan, where

    def dma_pieces(g, t):
        ty, h, i = t
        slot = g.where[t]
        Ps = []
        for k in range(4):
            L = []
            if ty == "x":
                if k == 0: L.append(f"s_add_u32 m0, s{sLX}, {slot*16384}")
                L.append(f"buffer_load_dwordx4 v{XD+k}, s[{sX}:{sX+3}], s{sRHO+i} offen offset:{k*1024} {g.xpol} lds".replace("  ", " "))
                Ps.append((L, (t, k))); continue
            if k == 0:
                L.append(f"s_add_u32 m0, s{sLW}, {slot*16384}")
                if ty in "KV": L.append(f"s_add_u32 s{sT}, s{sKV}, {h*262144 + i*16384}")
                elif ty == "q":
                    L.append(f"s_lshl_b32 s{sT}, s{sRHO+(i>>1)}, 12"); L.append(f"s_add_u32 s{sT}, s{sT}, s{sWQB}")
                    c = h * 512 + (i & 1) * 32 * 8192
                    if c: L.append(f"s_add_u32 s{sT}, s{sT}, {c}")
                else:
                    L.append(f"s_add_u32 s{sT}, s{sWOB}, {(h*256 + 128*(i&1))*896 + (i>>1)*128}")
            if k == 2:
                L.append(f"s_add_u32 m0, m0, 8192")
                L.append(f"s_add_u32 s{sT}, s{sT}, {8192 if ty in 'KV' else (16*8192 if ty == 'q' else 64*896)}")
            v = {"K": KD, "V": VD, "q": WD, "o": WD}[ty] + (k & 1)
            srd = {"K": sK, "V": sV, "q": sWQ, "o": sWO}[ty]
            pol = g.kvpol if ty in "KV" else g.wpol
            L.append(f"buffer_load_dwordx4 v{v}, s[{srd}:{srd+3}], s{sT} offen offset:{(k&1)*1024} {pol} lds".replace("  ", " "))
            Ps.append((L, (t, k)))
        return Ps

    def prologue(g):
        A = g.A
        A("s_cmp_ge_u32 s2, 256"); A("s_cbranch_scc1 L_end")
        if g.stamps and not g.cst: A(f"s_memrealtime s[{sSTAMP}:{sSTAMP+1}]")
        A("s_lshr_b32 s4, s2, 7")
        A("s_mul_i32 s7, s4, 40")
        A("s_add_u32 s4, s0, s7"); A("s_addc_u32 s5, s1, 0")
        A("s_load_dwordx4 s[84:87], s[4:5], 0")
        A("s_load_dwordx4 s[88:91], s[4:5], 16")
        A("s_load_dwordx2 s[92:93], s[4:5], 32")
        A("s_load_dwordx2 s[94:95], s[0:1], 96")
        A("s_and_b32 s3, s2, 7")
        A("s_bfe_u32 s6, s2, 0x40003")
        A("v_lshrrev_b32 v1, 6, v0"); A(f"v_readfirstlane_b32 s{sWV}, v1")
        A("v_and_b32 v2, 63, v0")
        if g.cpf:
            A("s_getpc_b64 s[96:97]")
            A("s_lshr_b32 s7, s2, 3"); A("s_and_b32 s7, s7, 31")
            A("v_lshlrev_b32 v10, 7, v0")
            A("s_and_b32 s7, s7, 3"); A("s_lshl_b32 s7, s7, 15"); A("v_add_u32 v10, s7, v10")
            A("v_min_u32 v10, CODE_BYTES, v10")
            A("global_load_dword v11, v10, s[96:97]")
            g.pre_vm = 1
        A("v_lshrrev_b32 v3, 5, v2")
        A("v_and_b32 v4, 31, v2")
        A(f"s_lshl_b32 s{sLW}, s{sWV}, 11"); A(f"s_lshl_b32 s{sLX}, s{sWV}, 12")
        A(f"s_lshl_b32 s{sKV}, s6, 22"); A("s_lshl_b32 s7, s3, 19"); A(f"s_add_u32 s{sKV}, s{sKV}, s7"); A(f"s_add_u32 s{sKV}, s{sKV}, s{sLW}")
        A(f"s_lshl_b32 s{sWQB}, s{sWV}, 15"); A("s_lshl_b32 s7, s3, 10"); A(f"s_add_u32 s{sWQB}, s{sWQB}, s7")
        if g.rot:
            A("s_mul_i32 s7, s6, 37"); A("s_lshr_b32 s7, s7, 8"); A("s_mul_i32 s7, s7, 7"); A("s_sub_u32 s7, s6, s7"); A(f"s_lshl_b32 s{sRHO}, s7, 7")
        else: A(f"s_mov_b32 s{sRHO}, 0")
        for i in range(1, 7):
            A(f"s_add_u32 s7, s{sRHO+i-1}, 128"); A(f"s_cmp_eq_u32 s7, 896"); A(f"s_cselect_b32 s{sRHO+i}, 0, s7")
        A("v_lshrrev_b32 v5, 3, v2"); A(f"s_lshl_b32 s7, s{sWV}, 5"); A("v_add_u32 v5, s7, v5")
        A("v_lshrrev_b32 v6, 4, v2"); A("v_and_b32 v7, 7, v2"); A("v_xor_b32 v6, v6, v7"); A("v_lshlrev_b32 v6, 4, v6")
        A("s_mul_i32 s7, s6, 100352")
        A("v_add_u32 v6, s7, v6")
        for k in range(4):
            A(f"v_add_u32 v7, {8*k}, v5"); A("v_min_u32 v7, 111, v7"); A("v_mul_u32_u24 v7, 896, v7")
            if k & 1: A("v_xor_b32 v8, 64, v6"); A(f"v_add_u32 v{XD+k}, v7, v8")
            else: A(f"v_add_u32 v{XD+k}, v7, v6")
            if k: A(f"v_subrev_u32 v{XD+k}, {k*1024}, v{XD+k}")
        A("v_lshlrev_b32 v5, 2, v3"); A("v_xor_b32 v5, v4, v5"); A("v_lshlrev_b32 v5, 4, v5")
        A(f"v_lshl_add_u32 v{WD}, v3, 13, v5"); A(f"v_xor_b32 v{WD+1}, 0x80, v{WD}"); A(f"v_add_u32 v{WD+1}, {2*8192-1024}, v{WD+1}")
        A(f"v_lshl_add_u32 v{VD}, v3, 9, v5"); A(f"v_xor_b32 v{VD+1}, 0x80, v{VD}")
        A("s_waitcnt lgkmcnt(0)")
        def srd(d, src, n):
            A(f"s_mov_b32 s{d}, s{src}"); A(f"s_mov_b32 s{d+1}, s{src+1}"); A(f"s_mov_b32 s{d+2}, {n}"); A(f"s_mov_b32 s{d+3}, 0x20000")
        g.srd = srd
        srd(sX, 84, 16*112*896); srd(sWQ, 90, 448*8192)

    def addr_setup(g):
        A = g.A; srd = g.srd
        srd(sK, 86, 1 << 26); srd(sV, 88, 1 << 26); srd(sWO, 92, 4096*896); srd(sWS, 94, 256*100352 + (1 << 20 if (g.stamps or g.dbg) else 0))
        A(f"s_lshl_b32 s{sWOB}, s3, 9"); A(f"s_lshl_b32 s7, s{sWV}, 4"); A(f"s_add_u32 s{sWOB}, s{sWOB}, s7"); A(f"s_mul_i32 s{sWOB}, s{sWOB}, 896")
        A(f"s_mul_i32 s{sST}, s2, 100352")
        A(f"s_mov_b32 s{sC}, {f2u(math.log2(math.e)/16.0):#x}")
        A(f"s_mov_b32 s{sK0}, {f2u(g.thr_log2*16.0/math.log2(math.e)):#x}")
        A(f"s_mov_b32 s{sFLAG}, 0")
        A(f"s_lshl_b32 s7, s{sWV}, 2"); A("v_add_u32 v5, s7, v3"); A("v_xor_b32 v5, v4, v5"); A("v_lshlrev_b32 v5, 4, v5")
        A(f"v_lshl_add_u32 v{KD}, v3, 9, v5"); A(f"v_xor_b32 v{KD+1}, 32, v{KD}")
        A("v_bfe_u32 v5, v4, 1, 3"); A("v_xor_b32 v5, v5, v3"); A("v_lshlrev_b32 v5, 4, v5"); A(f"v_lshl_add_u32 v{XR}, v4, 7, v5")
        A(f"v_add_u32 v{XR}, s{sLX}, v{XR}"); A(f"v_add_u32 v{XR}, 0x8000, v{XR}")
        for s in range(1, 4): A(f"v_xor_b32 v{XR+s}, {s<<5}, v{XR}")
        A("v_and_b32 v5, 15, v4"); A("v_xor_b32 v5, v5, v3"); A("v_lshlrev_b32 v5, 4, v5"); A(f"v_lshl_add_u32 v{KA}, v4, 9, v5")
        for s in range(1, 8): A(f"v_xor_b32 v{KA+s}, {s<<5}, v{KA}")
        A("v_bfe_u32 v5, v2, 2, 2")
        A("v_lshlrev_b32 v6, 9, v5"); A("v_lshl_add_u32 v6, v5, 6, v6")
        A("v_and_b32 v7, 16, v2"); A("v_lshl_add_u32 v6, v7, 1, v6")
        A("v_and_b32 v7, 3, v2")
        A(f"v_lshl_add_u32 v{VA}, v7, 3, v6"); A(f"v_lshl_add_u32 v{VA}, v3, 11, v{VA}"); A(f"v_add_u32 v{VA}, 0x10000, v{VA}")
        for s in range(1, 4): A(f"v_xor_b32 v{VA+s}, {s<<6}, v{VA}")
        A("v_and_b32 v8, 1, v2"); A("v_lshlrev_b32 v8, 4, v8"); A("v_and_b32 v9, 2, v2"); A("v_lshl_add_u32 v8, v9, 2, v8")
        A(f"v_add_u32 v{WA}, v6, v8"); A(f"v_lshl_add_u32 v{WA}, v3, 12, v{WA}"); A(f"v_add_u32 v{WA}, 0x18000, v{WA}")
        for s in range(1, 4): A(f"v_xor_b32 v{WA+s}, {s<<6}, v{WA}")
        g.base = {"K": 0, "V": 4 * 16384, "W": 6 * 16384}

    def emit_read(g, op, fr):
        A = g.A
        slot = g.where[op["tile"]]
        for n, (kind, aset, ai, imm) in enumerate(op["reads"]):
            tgt = slot * 16384
            if not (g.base[aset] <= tgt and tgt + 16383 - g.base[aset] <= 65535):
                nb = {"K": 0, "V": 4 * 16384, "W": 6 * 16384}[aset]
                if not (nb <= tgt and tgt + 16383 - nb <= 65535): nb = (slot // 4) * 4 * 16384 if slot < 8 else 6 * 16384
                rb, cnt = {"K": (KA, 8), "V": (VA, 4), "W": (WA, g.wcnt)}[aset]
                for r in range(cnt): A(f"v_add_u32 v{rb+r}, {(nb - g.base[aset]) & 0xffffffff:#x}, v{rb+r}")
                g.base[aset] = nb
            off = tgt + imm - g.base[aset]
            ar = {"K": KA, "V": VA, "W": WA}[aset] + ai
            if kind == "b128": A(f"ds_read_b128 {R(fr[0], fr[1], 4)}, v{ar} offset:{off}")
            else: A(f"ds_read_b64_tr_b16 {R(fr[0], fr[1]+2*n, 2)}, v{ar} offset:{off}")
            g.nrd += 1
        op["rd_last"] = g.nrd - 1

    def emit_main(g):
        A = g.A
        ops, steps = g.ops, g.steps
        N = len(ops)
        g.wcnt = 4
        vm = [("pf", 0)] * getattr(g, "pre_vm", 0)
        def vmit(L, key):
            for l in L:
                if not (g.nodma and l.startswith("buffer_load")): A(l)
            vm.append(key)
        for t in g.plan[-1]:
            for L, key in g.dma_pieces(t): vmit(L, key)
        g.addr_setup()
        bpos = {}
        for n, s in enumerate(steps): bpos[max(0, s["first"] - g.boff)] = n
        bp = {n: p for p, n in bpos.items()}
        load = [0.0] * (N + 2)
        for i, op in enumerate(ops):
            p = max(i - g.dist, bp[op["step"]])
            load[p] += len(op["reads"]); load[i] += 0.5 if g.pair else 1
        for p in bpos: load[p] += 2
        for p, L in g.fill.items(): load[p] += cost(L)
        dma_at = {}
        last_wq_pos = 0; first_wo_pos = None
        for n, s in enumerate(steps):
            Pc = [x for t in g.plan[n] for x in g.dma_pieces(t)]
            if not Pc: continue
            p0 = bp[n] + 1
            p1 = (bp[n + 1] - 1) if n + 1 < len(steps) else N - 1
            w = [g.qkw if (p + g.dist < N and ops[min(N - 1, p + 2)]["tile"][0] == "K") else 1.0 for p in range(p0, p1 + 1)]
            tot = sum(w); acc = 0.0; k = 0
            for idx, p in enumerate(range(p0, p1 + 1)):
                while k < len(Pc) and (k + 0.0) * tot / len(Pc) <= acc + 1e-9:
                    x = Pc[k]; k += 1
                    dma_at.setdefault(p, []).append(x); load[p] += len(x[0]) + 1
                    if x[1][0][0] == "q": last_wq_pos = p
                    if x[1][0][0] == "o" and first_wo_pos is None: first_wo_pos = p
                acc += w[idx]
            assert k == len(Pc)
        assert first_wo_pos > last_wq_pos + 1, (first_wo_pos, last_wq_pos)
        g.fill.setdefault(last_wq_pos + 1, []).insert(0, g.wo_d); load[last_wq_pos + 1] += len(g.wo_d)
        last_wq_op = max(i for i, o in enumerate(ops) if o["tile"][0] == "q")
        wo_r_pos = last_wq_op + 6; load[wo_r_pos] += len(g.wo_r)
        for instrs, p0, p1 in g.streams:
            C = sum(cost(x) for x in instrs)
            lo, hi = 0.0, 400.0
            for _ in range(40):
                mid = (lo + hi) / 2
                if sum(max(0.0, mid - load[p]) for p in range(p0, p1 + 1)) >= C: hi = mid
                else: lo = mid
            cap = [max(0.0, hi - load[p]) for p in range(p0, p1 + 1)]
            cum = 0.0; used = 0.0; k = 0
            for idx, p in enumerate(range(p0, p1 + 1)):
                cum += cap[idx]
                while k < len(instrs) and (used + cost(instrs[k]) / 2.0 <= cum + 1e-6 or p == p1):
                    g.fill.setdefault(p, []).append(instrs[k]); c = cost(instrs[k]); used += c; load[p] += c; k += 1
        g.load = load
        g.nrd = 0; rd_done = -1; next_rd = 0
        stamp_i = 1
        for i in range(N + 1):
            if g.cst and i in g.cst:
                k = g.cst.index(i); A(f"s_memtime s[{sSTAMP+2*k}:{sSTAMP+2*k+1}]")
            if i in bpos:
                n = bpos[i]; s = steps[n]
                if g.stamps and not g.cst and s["name"] in ("wq0_0", "a0", "a8", "a16", "a24", "wo1_6_0"):
                    A(f"s_memrealtime s[{sSTAMP+2*stamp_i}:{sSTAMP+2*stamp_i+1}]"); A(f"s_memtime s[{84+2*stamp_i}:{85+2*stamp_i}]"); stamp_i += 1
                last = max(vm.index((t, 3)) for t in s["tiles"])
                cnt = min(63, len(vm) - 1 - last)
                if g.nowait: cnt = 63
                A(f"; ---- step {n} {s['name']}")
                A(f"s_waitcnt vmcnt({cnt}) lgkmcnt(0)"); rd_done = g.nrd - 1
                A("s_barrier")
                for t in s["tiles"]:
                    if t[0] == "x":
                        for ks in range(4):
                            A(f"ds_read_b128 {R('a', XA + 16*t[2] + 4*ks, 4)}, v{XR+ks} offset:{(g.where[t]-2)*16384}"); g.nrd += 1
            if i == wo_r_pos:
                for l in g.wo_r: A(l)
                g.base["W"] = 0; g.wcnt = 2
            while next_rd < N and next_rd <= i + g.dist and bp[ops[next_rd]["step"]] <= i:
                g.emit_read(ops[next_rd], FR[next_rd % len(FR)]); next_rd += 1
            for L, key in dma_at.get(i, []): vmit(L, key)
            for l in flat(g.fill.get(i, [])):
                if l.startswith("@VM "): A(l[4:]); vm.append(("st", len(vm)))
                else: A(l)
            if i == N: break
            op = ops[i]
            if op["rd_last"] > rd_done:
                tgt = op["rd_last"]
                if g.pair and i + 1 < next_rd and i + 3 < next_rd: tgt = ops[i + 1]["rd_last"]
                c = g.nrd - 1 - tgt
                assert c <= 15
                A(f"s_waitcnt lgkmcnt({c})"); rd_done = tgt
            fr = FR[i % len(FR)]
            D = R(op["D"][0], op["D"][1], 16)
            A(f"v_mfma_f32_32x32x16_bf16 {D}, {R(fr[0], fr[1], 4)}, {R(op['B'][0], op['B'][1], 4)}, {'0' if op['zero'] else D}")

    def rare(g):
        A = g.A
        for la, fn, lb in g.stubs:
            A(f"{la}:"); A(f"s_call_b64 s[{sRET}:{sRET+1}], {fn}"); A(f"s_branch {lb}")
        A("L_newmax:")
        A(f"v_mov_b32 v{TB}, v{TA}"); A(f"v_permlane32_swap_b32 v{TA}, v{TB}")
        A(f"v_max3_f32 v{M}, v{TA}, v{TB}, v{M}")
        A(f"v_mul_f32 v{TA}, s{sC}, v{M}")
        A(f"v_sub_f32 v{TB}, v{MC}, v{TA}"); A(f"v_exp_f32 v{TB}, v{TB}")
        A(f"v_mov_b32 v{MC}, v{TA}"); A(f"v_add_f32 v{THR}, s{sK0}, v{M}")
        A(f"v_mul_f32 v{LA}, v{LA}, v{TB}"); A(f"v_mul_f32 v{LB}, v{LB}, v{TB}")
        A(f"s_mov_b32 s{sFLAG}, 1")
        A(f"s_setpc_b64 s[{sRET}:{sRET+1}]")
        A("L_rescale:")
        A("s_nop 15")
        for r in range(128): A(f"v_mul_f32 v{OACC+r}, v{OACC+r}, v{TB}")
        A(f"s_mov_b32 s{sFLAG}, 0")
        A("s_nop 1")
        A(f"s_setpc_b64 s[{sRET}:{sRET+1}]")

    def reduce_kernel(g):
        L = []; A = L.append
        A("s_cmp_ge_u32 s2, 784"); A("s_cbranch_scc1 L_rend")
        A("s_load_dwordx2 s[4:5], s[0:1], 80"); A("s_load_dwordx2 s[6:7], s[0:1], 96")
        A("v_lshrrev_b32 v1, 6, v0"); A("v_readfirstlane_b32 s3, v1")
        A("s_lshl_b32 s16, s2, 2"); A("s_add_u32 s16, s16, s3")
        A(f"s_mul_i32 s17, s16, {math.ceil(2**20/98)}"); A("s_lshr_b32 s17, s17, 20")
        A("s_mul_i32 s18, s17, 98"); A("s_sub_u32 s18, s16, s18")
        A(f"s_mul_i32 s19, s18, {math.ceil(2**16/7)}"); A("s_lshr_b32 s19, s19, 16")
        A("s_mul_i32 s20, s19, 7"); A("s_sub_u32 s20, s18, s20")
        A("v_and_b32 v2, 15, v0"); A("v_bfe_u32 v3, v0, 4, 2")
        A("v_mul_u32_u24 v4, 3584, v3"); A("v_lshl_add_u32 v4, v2, 4, v4")
        A("s_mul_i32 s21, s17, 802816"); A("s_mul_i32 s22, s20, 14336"); A("s_add_u32 s21, s21, s22"); A("s_lshl_b32 s22, s19, 8"); A("s_add_u32 s21, s21, s22")
        A("s_waitcnt lgkmcnt(0)")
        A("s_mov_b32 s8, s6"); A("s_mov_b32 s9, s7"); A(f"s_mov_b32 s10, {256*100352}"); A("s_mov_b32 s11, 0x20000")
        A("s_mov_b32 s12, s4"); A("s_mov_b32 s13, s5"); A(f"s_mov_b32 s14, {16*112*896*2}"); A("s_mov_b32 s15, 0x20000")
        for p in range(8):
            A(f"buffer_load_dwordx4 v[{8+4*p}:{11+4*p}], v4, s[8:11], s21 offen {g.rdpol}".rstrip())
            if p < 7: A("s_add_u32 s21, s21, 100352")
        A("v_lshrrev_b32 v5, 1, v2"); A("v_mul_u32_u24 v5, 1792, v5"); A("v_lshl_add_u32 v5, v3, 5, v5"); A("v_and_b32 v6, 1, v2"); A("v_lshl_add_u32 v5, v6, 3, v5")
        A("s_and_b32 s22, s17, 15"); A("s_mul_i32 s22, s22, 112"); A("s_lshl_b32 s23, s19, 3"); A("s_add_u32 s22, s22, s23"); A("s_mul_i32 s22, s22, 1792")
        A("s_lshr_b32 s23, s17, 4"); A("s_mul_i32 s23, s23, 896"); A("s_add_u32 s22, s22, s23"); A("s_lshl_b32 s23, s20, 7"); A("s_add_u32 s22, s22, s23")
        for p in range(8):
            A(f"s_waitcnt vmcnt({7-p})")
            for d in range(4):
                src = 8 + 4 * p + d
                if p == 0:
                    A(f"v_lshlrev_b32 v{40+2*d}, 16, v{src}"); A(f"v_and_b32 v{41+2*d}, 0xffff0000, v{src}")
                else:
                    A(f"v_lshlrev_b32 v6, 16, v{src}"); A(f"v_and_b32 v7, 0xffff0000, v{src}")
                    A(f"v_add_f32 v{40+2*d}, v{40+2*d}, v6"); A(f"v_add_f32 v{41+2*d}, v{41+2*d}, v7")
        for d in range(4): A(f"v_cvt_pk_bf16_f32 v{48+d}, v{40+2*d}, v{41+2*d}")
        A("buffer_store_dwordx2 v[48:49], v5, s[12:15], s22 offen")
        A("buffer_store_dwordx2 v[50:51], v5, s[12:15], s22 offen offset:16")
        A("L_rend:"); A("s_endpgm")
        return fix_hazards(L)[0]

    def generate(g):
        g.build_program(); g.schedule_dma()
        g.prologue(); g.emit_main()
        A = g.A
        if g.stamps:
            A("s_waitcnt vmcnt(0)")
            if not g.cst: A(f"s_memrealtime s[{sSTAMP+14}:{sSTAMP+15}]"); A("s_memtime s[98:99]")
            A("s_waitcnt lgkmcnt(0)")
            for i in range(8): A(f"v_mov_b32 v{i}, s{sSTAMP+2*i}")
            for i in range(8): A(f"v_mov_b32 v{12+i}, s{84+2*i}")
            A(f"s_lshl_b32 s3, s2, 5"); A(f"s_add_u32 s3, s3, {256*100352}"); A("v_mov_b32 v8, 0"); A("v_mov_b32 v9, 0x2000")
            A(f"s_cmp_lg_u32 s{sWV}, 0"); A("s_cbranch_scc1 L_end")
            A(f"buffer_store_dwordx4 v[0:3], v8, s[{sWS}:{sWS+3}], s3 offen"); A(f"buffer_store_dwordx4 v[4:7], v8, s[{sWS}:{sWS+3}], s3 offen offset:16")
            A(f"buffer_store_dwordx4 v[12:15], v9, s[{sWS}:{sWS+3}], s3 offen"); A(f"buffer_store_dwordx4 v[16:19], v9, s[{sWS}:{sWS+3}], s3 offen offset:16")
        A("L_end:"); A("s_endpgm")
        g.rare()
        body, nops = fix_hazards(g.L)
        g.nops = nops
        hdr = open("cdna_kernels/" + NAME + ".s.ref").read().split("; Override launch")[0]
        o = [hdr.rstrip()]
        o.append(f"; @launch kernel={NAME}_kernel grid=(256,1,1) block=(256,1,1) lds=163840")
        o.append(f"; @launch kernel=reduce_kernel grid=(784,1,1) block=(256,1,1) lds=0")
        o += ['.amdgcn_target "amdgcn-amd-amdhsa--gfx950"', ".text", ".globl reduce_kernel", ".p2align 8", ".type reduce_kernel,@function", "reduce_kernel:"]
        o += g.reduce_kernel()
        o += [f".globl {NAME}_kernel", ".p2align 8", f".type {NAME}_kernel,@function", f"{NAME}_kernel:"]
        o += body
        o += ["L_codeend:", f".set CODE_BYTES, L_end - {NAME}_kernel - 256"]
        def kd(n, v, acc, s):
            return [".p2align 6", f".amdhsa_kernel {n}", f"  .amdhsa_next_free_vgpr {v}", f"  .amdhsa_next_free_sgpr {s}", f"  .amdhsa_accum_offset {acc}",
                    "  .amdhsa_group_segment_fixed_size 0", "  .amdhsa_kernarg_size 104", "  .amdhsa_user_sgpr_count 2",
                    "  .amdhsa_user_sgpr_kernarg_segment_ptr 1", "  .amdhsa_system_sgpr_workgroup_id_x 1", ".end_amdhsa_kernel"]
        o += ['.section .rodata,"a"'] + kd(NAME + "_kernel", 512, 256, 102) + kd("reduce_kernel", 56, 56, 32)
        return "\n".join(o) + "\n"

if __name__ == "__main__":
    out = sys.argv[1] if len(sys.argv) > 1 else "k.s"
    kw = {}; verbose = False
    for a in sys.argv[2:]:
        if a == "-v": verbose = True; continue
        k, v = a.split("=", 1)
        try: v = eval(v)
        except Exception: pass
        kw[k] = v
    g = Gen(**kw)
    txt = g.generate()
    open(out, "w").write(txt)
    print(out, "bytes", len(txt), "lines", txt.count("\n"), "nops", g.nops)
    if verbose:
        for n in range(-1, len(g.steps)):
            f = g.steps[n]["first"] if n >= 0 else 0
            e = g.steps[n + 1]["first"] if n + 1 < len(g.steps) else len(g.ops)
            print(n, g.steps[n]["name"] if n >= 0 else "pro", f, [("".join(map(str, t)), g.where[t]) for t in g.plan[n]], " ".join(f"{x:.0f}" for x in g.load[f:e]) if n >= 0 else "")
```

```python
import sys, math, struct
from asmlib import fix_hazards
NAME = "concat_heads__mha_block_cached__gqa_block_cached__near_ridge"

def f2u(x): return struct.unpack("<I", struct.pack("<f", x))[0]

OACC = 0; QF = 128; S = 192; P = 208
FR = [("v", 216), ("a", 240), ("a", 244), ("v", 220), ("a", 248), ("a", 252)]
KA = 224; VA = 232; WA = 236
KD = 240; VD = 242; WD = 244
XV = 246; MC = 247; THR = 248; M = 249; LA = 250; LB = 251; TA = 252; TB = 253; T0 = 254; T1 = 255
XD = S; XR = S + 4
XA = 128
O0P = 128
PP = 192
AB = {0: 0, 1: 32, 2: 64, 3: 96, 4: 0, 5: 32, 6: 64}
sK, sV, sWQ, sWO, sX, sWS = 8, 12, 16, 20, 24, 28
sKV, sLW, sWQB, sWOB, sT, sC, sK0, sST = 32, 33, 34, 35, 36, 37, 38, 39
sRHO = 40
sLX = 48; sFLAG = 49
sRET = 56
sWV = 58; sT2 = 60; sT3 = 61; sDB = 52; sFB = 62
sSTAMP = 64

def R(f, b, n=1): return f"{f}{b}" if n == 1 else f"{f}[{b}:{b+n-1}]"
def flat(x):
    for y in x:
        if isinstance(y, list): yield from flat(y)
        else: yield y
def cost(ins):
    c = 0
    for l in flat([ins]):
        if l.endswith(":"): continue
        c += 2 if l.startswith(("v_exp", "v_rcp")) else (0 if l.startswith("s_call") else 1)
    return c

class Gen:
    def __init__(g, kvpol="nt", wpol="", xpol="", stpol="", dist=4, boff=3, stamps=False, pace=0.5, kv0=0, rot=True,
                 thr_log2=8.0, dbg=None, rdpol="", cst=None, nowait=False, nodma=False, pair=True, cpf=True, qkw=2.0, wo1g=2, wslots0=4, xc=(0, 2, 3, 4, 5, 6, 7), npro=7, noreduce=False, fuse=False, rs=False, epi_early=12, publag=3, xslots=(5, 4, 3)):
        g.__dict__.update(locals()); del g.__dict__["g"]
        g.L = []
        g.ops = []; g.steps = []; g.fill = {}; g.streams = []
        g.nlab = 0

    def A(g, t): g.L.append(t)

    def add_op(g, tile, reads, B, D, zero):
        g.ops.append(dict(tile=tile, reads=reads, B=B, D=D, zero=zero, step=len(g.steps) - 1))
    def begin_step(g, tiles, name=""):
        g.steps.append(dict(tiles=tiles, first=len(g.ops), name=name))
    def spread(g, instrs, p0, p1):
        g.streams.append((instrs, p0, p1))

    def ops_wq(g, h, i):
        t = ("q", h, i)
        for m in range(2):
            for T in range(8):
                rd = [("tr", "W", T & 3, (16 * m + 4 * tt) * 512 + (T >> 2) * 256) for tt in range(2)]
                D = ("v", OACC + 16 * T) if h == 0 else ("a", 16 * T)
                g.add_op(t, rd, ("a", XA + (2 * i + m) * 4), D, i == 0 and m == 0)
    def ops_qk(g, h, j):
        for s in range(16):
            g.add_op(("K", h, j), [("b128", "K", s & 7, (s >> 3) * 256)], ("v", QF + 4 * s), ("v", S), s == 0)
    def ops_pv(g, h, j):
        for m in range(2):
            for dt in range(8):
                rd = [("tr", "V", dt & 3, (16 * m + 8 * tt) * 512 + (dt >> 2) * 256) for tt in range(2)]
                g.add_op(("V", h, j), rd, ("v", P + 4 * m), ("v", OACC + 16 * dt), j == 0 and m == 0)
    def ops_wo(g, h, grp, u, acc, zero):
        for m in range(8):
            for T in range(2):
                rd = [("tr", "W", T, (16 * m + 8 * tt) * 128) for tt in range(2)]
                ks = 8 * u + m
                B = ("a", O0P + 4 * ks) if h == 0 else ("v", QF + 4 * ks)
                g.add_op(("o", h, 2 * grp + u), rd, B, (acc[0], acc[1] + 16 * T), zero and u == 0 and m == 0)

    def softmax(g, j):
        s = lambda i: f"v{S+i}"
        a = [f"v_max3_f32 v{TA}, {s(0)}, {s(1)}, {s(2)}", f"v_max3_f32 v{TB}, {s(3)}, {s(4)}, {s(5)}",
             f"v_max3_f32 v{TA}, v{TA}, {s(6)}, {s(7)}", f"v_max3_f32 v{TB}, v{TB}, {s(8)}, {s(9)}",
             f"v_max3_f32 v{TA}, v{TA}, {s(10)}, {s(11)}", f"v_max3_f32 v{TB}, v{TB}, {s(12)}, {s(13)}",
             f"v_max3_f32 v{TA}, v{TA}, {s(14)}, {s(15)}", f"v_max_f32 v{TA}, v{TA}, v{TB}"]
        if j == 0:
            a += [f"v_mov_b32 v{TB}, v{TA}", f"v_permlane32_swap_b32 v{TA}, v{TB}", f"v_max_f32 v{M}, v{TA}, v{TB}",
                  f"v_mul_f32 v{MC}, s{sC}, v{M}", f"v_add_f32 v{THR}, s{sK0}, v{M}"]
        else:
            g.nlab += 1
            a += [[f"v_cmp_gt_f32 vcc, v{TA}, v{THR}", f"s_cbranch_vccnz L_ra{g.nlab}", f"L_rb{g.nlab}:"]]
            g.stubs.append((f"L_ra{g.nlab}", "L_newmax", f"L_rb{g.nlab}"))
        f = [f"v_fma_f32 {s(i)}, {s(i)}, s{sC}, -v{MC}" for i in range(16)]
        e = [f"v_exp_f32 {s(i)}, {s(i)}" for i in range(16)]
        ad = []
        for i in range(16):
            l = LA if i % 2 == 0 else LB
            ad.append(f"v_mov_b32 v{l}, {s(i)}" if (j == 0 and i < 2) else f"v_add_f32 v{l}, v{l}, {s(i)}")
        seq = [f[0], f[1]]
        for i in range(16):
            seq.append(e[i])
            if i + 2 < 16: seq.append(f[i + 2])
            if i >= 1: seq.append(ad[i - 1])
        seq.append(ad[15])
        cv = [f"v_cvt_pk_bf16_f32 v{P+i}, {s(2*i)}, {s(2*i+1)}" for i in range(8)]
        return a + seq, cv

    def finish_l(g, dst):
        return [f"v_add_f32 v{LA}, v{LA}, v{LB}", f"v_mov_b32 v{LB}, v{LA}", f"v_permlane32_swap_b32 v{LA}, v{LB}",
                f"v_add_f32 v{LA}, v{LA}, v{LB}", f"v_rcp_f32 v{dst}, v{LA}"]

    def lane_setup_wo(g):
        d = [f"v_mbcnt_lo_u32_b32 v{T0}, -1, 0", f"v_mbcnt_hi_u32_b32 v{T0}, -1, v{T0}",
             f"v_lshrrev_b32 v{T1}, 2, v{T0}", f"v_and_b32 v{T1}, 4, v{T1}", f"v_xor_b32 v{T1}, v{T0}, v{T1}", f"v_and_b32 v{T1}, 7, v{T1}",
             f"v_lshlrev_b32 v{T1}, 4, v{T1}", f"v_lshrrev_b32 v{WD}, 3, v{T0}", f"v_mul_u32_u24 v{WD}, 896, v{WD}", f"v_add_u32 v{WD}, v{WD}, v{T1}",
             f"v_add_u32 v{WD+1}, {8*896-1024}, v{WD}"]
        r = [f"v_mbcnt_lo_u32_b32 v{T0}, -1, 0", f"v_mbcnt_hi_u32_b32 v{T0}, -1, v{T0}",
             f"v_lshrrev_b32 v{WA}, 5, v{T0}", f"v_lshlrev_b32 v{WA}, 9, v{WA}",
             f"v_and_b32 v{T1}, 12, v{T0}", f"v_lshl_add_u32 v{WA}, v{T1}, 5, v{WA}",
             f"v_and_b32 v{T1}, 8, v{T0}", f"v_lshl_add_u32 v{WA}, v{T1}, 3, v{WA}",
             f"v_and_b32 v{T1}, 16, v{T0}", f"v_lshl_add_u32 v{WA}, v{T1}, 1, v{WA}",
             f"v_and_b32 v{T1}, 3, v{T0}", f"v_lshl_add_u32 v{WA}, v{T1}, 3, v{WA}",
             f"v_xor_b32 v{WA+1}, 64, v{WA}"]
        return d, r

    def store_setup(g):
        return [f"v_mbcnt_lo_u32_b32 v{T0}, -1, 0", f"v_mbcnt_hi_u32_b32 v{T0}, -1, v{T0}",
                f"v_and_b32 v{T1}, 31, v{T0}", f"s_lshl_b32 s{sT2}, s{sWV}, 5", f"v_add_u32 v{T1}, s{sT2}, v{T1}",
                f"v_lshrrev_b32 v{T0}, 5, v{T0}", f"v_lshlrev_b32 v{T0}, 4, v{T0}", f"v_lshl_add_u32 v{XV}, v{T1}, 5, v{T0}",
                [f"v_cmp_lt_u32 vcc, 111, v{T1}", f"v_bfrev_b32 v{T0}, 1", "s_nop 0", f"v_cndmask_b32 v{XV}, v{XV}, v{T0}, vcc"]]

    def build_program(g):
        g.stubs = []
        for i in range(14):
            g.begin_step([("q", 0, i)] + [("x", 0, u) for u in range(7) if g.xc[u] == i], name=f"wq0_{i}")
            g.ops_wq(0, i)
        seg = {}
        for t in range(33):
            h, j = t >> 4, t & 15
            hp, jp = (t - 1) >> 4, (t - 1) & 15
            W = None
            if t < 14: W = ("q", 1, t)
            if 17 <= t < 31: W = ("o", 0, t - 17)
            tiles = ([("K", h, j)] if t < 32 else []) + ([("V", hp, jp)] if t >= 1 else []) + ([W] if W else [])
            g.begin_step(tiles, name=f"a{t}")
            p_qk = len(g.ops)
            if t < 32: g.ops_qk(h, j)
            p_pv = len(g.ops)
            if t >= 1: g.ops_pv(hp, jp)
            p_w = len(g.ops)
            if W and t < 14: g.ops_wq(1, t)
            if W and t >= 17:
                grp, u = (t - 17) >> 1, (t - 17) & 1
                g.ops_wo(0, grp, u, ("a", AB[grp]), True)
            seg[t] = (p_qk, p_pv, p_w, len(g.ops))
        g.seg = seg
        for t in range(33):
            p_qk, p_pv, p_w, p_end = seg[t]
            j = t & 15
            if t == 0:
                for T in range(8):
                    cv = [f"v_cvt_pk_bf16_f32 v{QF+8*T+e}, v{OACC+16*T+2*e}, v{OACC+16*T+2*e+1}" for e in range(8)]
                    p = p_qk - 4 + (3 * T) // 2
                    g.spread(cv, p, p + 1)
            if t < 32:
                body, cv = g.softmax(j)
                tail = []
                if j == 15: tail = g.finish_l(XV if t == 15 else THR)
                if j != 0:
                    g.nlab += 1
                    g.fill.setdefault(p_w, []).append([f"s_cmp_lg_u32 s{sFLAG}, 0", f"s_cbranch_scc1 L_ra{g.nlab}", f"L_rb{g.nlab}:"])
                    g.stubs.append((f"L_ra{g.nlab}", "L_rescale", f"L_rb{g.nlab}"))
                if p_end > p_w and p_w > p_pv:
                    g.spread(body, p_pv + 2, p_end - 4); g.spread(cv + tail, p_end - 3, p_end)
                elif p_end > p_pv:
                    if p_w > p_pv:
                        g.spread(body, p_pv + 2, p_end - 1); g.spread(cv + tail, p_end, p_end)
                    else:
                        g.spread(body, p_pv + 2, p_end - 2); g.spread(cv + tail, p_end - 1, p_end)
            if t == 15:
                for T in range(8):
                    o = []
                    for e in range(8):
                        d = QF + 8 * T + e; tt = T0 if e % 2 == 0 else T1
                        o += [f"v_accvgpr_read_b32 v{d}, a{16*T+2*e}", f"v_accvgpr_read_b32 v{tt}, a{16*T+2*e+1}", f"v_cvt_pk_bf16_f32 v{d}, v{d}, v{tt}"]
                    p = p_pv + 1 + (7 * T) // 2
                    g.spread(o, p, p + 2)
            if t == 16:
                nq, npv = seg[17][0], seg[17][1]
                for dt in range(8):
                    o = []
                    for e in range(8):
                        b = OACC + 16 * dt + 2 * e
                        o += [f"v_mul_f32 v{b}, v{b}, v{XV}", f"v_mul_f32 v{b+1}, v{b+1}, v{XV}"]
                    for e in range(8):
                        b = OACC + 16 * dt + 2 * e
                        o += [f"v_cvt_pk_bf16_f32 v{b}, v{b}, v{b+1}"]
                    for e in range(8):
                        b = OACC + 16 * dt + 2 * e
                        o += [f"v_accvgpr_write_b32 a{O0P+8*dt+e}, v{b}"]
                    g.spread(o, nq + 1 + 2 * dt, nq + 2 + 2 * dt)
            if t in (19, 21, 23):
                grp = (t - 19) // 2
                o = []
                for e in range(16):
                    a0 = AB[grp] + 2 * e
                    o += [f"v_accvgpr_read_b32 v{T0}, a{a0}", f"v_accvgpr_read_b32 v{T1}, a{a0+1}", f"v_cvt_pk_bf16_f32 v{T0}, v{T0}, v{T1}",
                          f"v_accvgpr_write_b32 a{PP+16*grp+e}, v{T0}"]
                g.spread(o[:32], p_qk + 2, p_qk + 15)
                g.spread(o[32:], seg[t + 1][0] + 1, seg[t + 1][0] + 15)
            if t == 26:
                g.spread(g.store_setup(), p_qk + 1, p_qk + 12)
        p_last_pv = seg[32][1]
        seq = [6, 5, 0, 4, 1, 3, 2]
        vb = {0: 0, 1: 32, 2: 0}
        stg = {6: 96, 5: 64, 4: 96, 3: 64}
        pos = []
        cnt = 0
        for k, grp in enumerate(seq):
            acc = ("a", AB[grp]) if grp >= 3 else ("v", vb[grp])
            pos.append(len(g.ops))
            for u in range(2):
                if cnt % g.wo1g == 0: g.begin_step([], name=f"wo1_{grp}_{u}")
                cnt += 1
                g.steps[-1]["tiles"].append(("o", 1, 2 * grp + u))
                g.ops_wo(1, grp, u, acc, False)
        pos.append(len(g.ops))
        for dt in range(8):
            o = []
            for half in range(2):
                for e in range(4 * half, 4 * half + 4):
                    b = OACC + 16 * dt + 2 * e
                    o += [f"v_mul_f32 v{b}, v{b}, v{THR}", f"v_mul_f32 v{b+1}, v{b+1}, v{THR}"]
                for e in range(4 * half, 4 * half + 4):
                    b = OACC + 16 * dt + 2 * e
                    o += [f"v_cvt_pk_bf16_f32 v{QF+8*dt+e}, v{b}, v{b+1}"]
            p = pos[0] - 5 + 4 * dt + (1 if dt > 2 else 0)
            g.spread(o, p, p + 3)
        for k, grp in enumerate(seq):
            o = []
            base = stg[grp] if grp >= 3 else vb[grp]
            for T in range(2):
                for half in range(2):
                    for e in range(4 * half, 4 * half + 4):
                        b = base + 16 * T + 2 * e
                        if grp >= 3:
                            a0 = AB[grp] + 16 * T + 2 * e
                            o += [f"v_accvgpr_read_b32 v{b}, a{a0}", f"v_accvgpr_read_b32 v{b+1}, a{a0+1}"]
                        o += [f"v_cvt_pk_bf16_f32 v{base+16*T+e}, v{b}, v{b+1}"]
                    th = (2 * grp + T) * 2 + half
                    if g.rs: pre = [f"s_mul_i32 s{sT3}, s{sRHO+grp}, 112", f"s_add_u32 s{sT3}, s{sT3}, s{sST}"] if (T == 0 and half == 0) else [f"s_add_u32 s{sT3}, s{sT3}, 3584"]
                    else: pre = [f"s_add_u32 s{sT3}, s{sST}, {th*3584}"]
                    o += [pre + [
                           f"@VM buffer_store_dwordx4 {R('v', base+16*T+4*half, 4)}, v{XV}, s[{sWS}:{sWS+3}], s{sT3} offen {g.stpol}".rstrip()]]
            if k + 1 < len(seq):
                nxt2 = seq[k + 2] if k + 2 < len(seq) else None
                g.spread(o, pos[k + 1] + 2, pos[k + 2] - 1 - g.epi_early)
                if nxt2 is not None and nxt2 < 3:
                    o = []
                    for e in range(16):
                        d = vb[nxt2] + 2 * e
                        o += [f"v_accvgpr_read_b32 v{d+1}, a{PP+16*nxt2+e}", f"v_lshlrev_b32 v{d}, 16, v{d+1}", f"v_and_b32 v{d+1}, 0xffff0000, v{d+1}"]
                    g.spread(o, pos[k + 1], pos[k + 2] - 1)
            elif g.rs:
                g.last_epi = o
            else:
                g.spread(o, pos[k + 1], pos[k + 1])
        g.wo_d, g.wo_r = g.lane_setup_wo()
        if g.rs:
            t = ["s_and_b32 s7, s2, 7"]
            for k, grp in enumerate(seq):
                t += ["s_add_u32 s7, s7, 1", "s_sub_u32 s5, s7, 7", "s_cselect_b32 s7, s7, s5", f"s_lshl_b32 s{sRHO+grp}, s7, 7"]
            g.wo_d = g.wo_d + t
            FL = 256 * 100352
            p = g.steps[8]["first"] + 2
            g.fill.setdefault(p, []).append([f"v_mbcnt_lo_u32_b32 v{T0}, -1, 0", f"v_mbcnt_hi_u32_b32 v{T0}, -1, v{T0}", f"v_and_b32 v{T0}, 31, v{T0}", f"v_lshlrev_b32 v{T0}, 2, v{T0}",
                f"v_mov_b32 v{T1}, 0", "s_lshl_b32 s5, s2, 7", f"s_add_u32 s5, s5, {FL}",
                f"@VM buffer_store_dword v{T1}, v{T0}, s[{sWS}:{sWS+3}], s5 offen sc1"])
            p = g.seg[4][0] + 2
            g.fill.setdefault(p, []).append([f"v_mbcnt_lo_u32_b32 v{T0}, -1, 0", f"v_mbcnt_hi_u32_b32 v{T0}, -1, v{T0}", f"v_lshlrev_b32 v{T0}, 12, v{T0}",
                f"v_mov_b32 v{T1}, 1", "s_lshr_b32 s5, s2, 3", "s_lshl_b32 s5, s5, 2",
                f"@VM buffer_atomic_add v{T1}, v{T0}, s[{sDB}:{sDB+3}], s5 offen sc1"])
            p = g.seg[29][0] + 2
            g.fill.setdefault(p, []).append([f"v_mov_b32 v{T0}, 0", "s_lshr_b32 s5, s2, 3", "s_lshl_b32 s5, s5, 2",
                f"@VM buffer_load_dword v{T1}, v{T0}, s[{sDB}:{sDB+3}], s5 offen sc1"])
            p = g.seg[32][0] + 1
            g.fill.setdefault(p, []).append([f"v_readfirstlane_b32 s7, v{T1}", "s_cmp_lt_u32 s7, 32", "s_cbranch_scc1 L_hs", "L_hsb:",
                f"v_mbcnt_lo_u32_b32 v{T0}, -1, 0", f"v_mbcnt_hi_u32_b32 v{T0}, -1, v{T0}",
                f"v_add_u32 v{T1}, s{sWV}, v{T0}", f"v_min_u32 v{T1}, 1, v{T1}", f"v_lshlrev_b32 v{T1}, 31, v{T1}",
                "s_and_b32 s7, s2, 7", "s_lshl_b32 s7, s7, 2", f"v_add_u32 v{KA}, s7, v{T1}", f"v_mov_b32 v{KA+1}, 1",
                f"v_lshrrev_b32 v{T1}, 3, v{T0}", f"v_min_u32 v{T1}, 1, v{T1}", f"v_lshlrev_b32 v{T1}, 31, v{T1}", f"v_lshl_add_u32 v{KA+2}, v{T0}, 2, v{T1}",
                "s_and_b32 s5, s2, 0xf8", "s_lshl_b32 s5, s5, 7", f"s_add_u32 s{sFB}, s5, {FL}"])
        g.seq = seq; g.pos = pos

    def schedule_dma(g):
        steps = g.steps
        need_at = {t: n for n, s in enumerate(steps) for t in s["tiles"]}
        cls = lambda t: {"K": "K", "V": "V", "x": "X"}.get(t[0], "W")
        q = {c: [t for s in steps for t in s["tiles"] if cls(t) == c] for c in "KVWX"}
        free = set(range(10)); where = {}
        plan = {}
        credit = g.kv0
        W0 = [7, 8, 9, 6][:g.wslots0]
        def allowed(c, n):
            xs = list(g.xslots) if (q["X"]) else []
            w0 = bool(q["W"]) and q["W"][0][:2] == ("q", 0)
            if c == "X": return list(g.xslots)
            if c == "K": return [s for s in [0, 1, 2, 3] if s not in xs]
            if c == "V": return [s for s in [4, 5, 6] if s not in xs and not (w0 and s in W0)]
            s = W0 if w0 else [7, 8, 9]
            if not q["V"]: s = s + [6, 5, 4]
            if not q["K"]: s = s + [3, 2, 1, 0]
            return s
        for n in range(-1, len(steps)):
            if n >= 1:
                for t in steps[n - 1]["tiles"]: free.add(where[t])
            if 0 <= n < 14: credit += g.pace
            L = []
            while True:
                if n == -1 and len(L) >= g.npro: break
                cands = []
                for c in "XWKV":
                    if not q[c]: continue
                    sl = [s for s in allowed(c, n) if s in free]
                    if not sl: continue
                    if c in "KV" and n < 14 and credit < 1: continue
                    cands.append((need_at[q[c][0]], "XWKV".index(c), c, sl[0]))
                if not cands: break
                _, _, c, sl = min(cands)
                t = q[c].pop(0); where[t] = sl; free.discard(sl); L.append(t)
                if c in "KV" and n < 14: credit -= 1
            plan[n] = L
        g.plan, g.where = plan, where

    def dma_pieces(g, t):
        ty, h, i = t
        slot = g.where[t]
        Ps = []
        for k in range(4):
            L = []
            if ty == "x":
                if k == 0: L.append(f"s_add_u32 m0, s{sLX}, {slot*16384}")
                L.append(f"buffer_load_dwordx4 v{XD+k}, s[{sX}:{sX+3}], s{sRHO+i} offen offset:{k*1024} {g.xpol} lds".replace("  ", " "))
                Ps.append((L, (t, k))); continue
            if k == 0:
                L.append(f"s_add_u32 m0, s{sLW}, {slot*16384}")
                if ty in "KV": L.append(f"s_add_u32 s{sT}, s{sKV}, {h*262144 + i*16384}")
                elif ty == "q":
                    L.append(f"s_lshl_b32 s{sT}, s{sRHO+(i>>1)}, 12"); L.append(f"s_add_u32 s{sT}, s{sT}, s{sWQB}")
                    c = h * 512 + (i & 1) * 32 * 8192
                    if c: L.append(f"s_add_u32 s{sT}, s{sT}, {c}")
                else:
                    if g.rs:
                        L.append(f"s_add_u32 s{sT}, s{sWOB}, s{sRHO+(i>>1)}")
                        if h or (i & 1): L.append(f"s_add_u32 s{sT}, s{sT}, {(h*256 + 128*(i&1))*896}")
                    else:
                        L.append(f"s_add_u32 s{sT}, s{sWOB}, {(h*256 + 128*(i&1))*896 + (i>>1)*128}")
            if k == 2:
                L.append(f"s_add_u32 m0, m0, 8192")
                L.append(f"s_add_u32 s{sT}, s{sT}, {8192 if ty in 'KV' else (16*8192 if ty == 'q' else 64*896)}")
            v = {"K": KD, "V": VD, "q": WD, "o": WD}[ty] + (k & 1)
            srd = {"K": sK, "V": sV, "q": sWQ, "o": sWO}[ty]
            pol = g.kvpol if ty in "KV" else g.wpol
            L.append(f"buffer_load_dwordx4 v{v}, s[{srd}:{srd+3}], s{sT} offen offset:{(k&1)*1024} {pol} lds".replace("  ", " "))
            Ps.append((L, (t, k)))
        return Ps

    def prologue(g):
        A = g.A
        A("s_cmp_ge_u32 s2, 256"); A("s_cbranch_scc1 L_end")
        if g.stamps and not g.cst: A(f"s_memrealtime s[{sSTAMP}:{sSTAMP+1}]")
        A("s_lshr_b32 s4, s2, 7")
        A("s_mul_i32 s7, s4, 40")
        A("s_add_u32 s4, s0, s7"); A("s_addc_u32 s5, s1, 0")
        A("s_load_dwordx4 s[84:87], s[4:5], 0")
        A("s_load_dwordx4 s[88:91], s[4:5], 16")
        A("s_load_dwordx2 s[92:93], s[4:5], 32")
        A("s_load_dwordx2 s[94:95], s[0:1], 96")
        if g.fuse or g.rs: A("s_load_dwordx4 s[80:83], s[0:1], 80")
        A("s_and_b32 s3, s2, 7")
        A("s_bfe_u32 s6, s2, 0x40003")
        A("v_lshrrev_b32 v1, 6, v0"); A(f"v_readfirstlane_b32 s{sWV}, v1")
        A("v_and_b32 v2, 63, v0")
        if g.cpf:
            A("s_getpc_b64 s[96:97]")
            A("s_lshr_b32 s7, s2, 3"); A("s_and_b32 s7, s7, 31")
            A("v_lshlrev_b32 v10, 7, v0")
            A("s_and_b32 s7, s7, 3"); A("s_lshl_b32 s7, s7, 15"); A("v_add_u32 v10, s7, v10")
            A("v_min_u32 v10, CODE_BYTES, v10")
            A("global_load_dword v11, v10, s[96:97]")
            g.pre_vm = 1
        A("v_lshrrev_b32 v3, 5, v2")
        A("v_and_b32 v4, 31, v2")
        A(f"s_lshl_b32 s{sLW}, s{sWV}, 11"); A(f"s_lshl_b32 s{sLX}, s{sWV}, 12")
        A(f"s_lshl_b32 s{sKV}, s6, 22"); A("s_lshl_b32 s7, s3, 19"); A(f"s_add_u32 s{sKV}, s{sKV}, s7"); A(f"s_add_u32 s{sKV}, s{sKV}, s{sLW}")
        A(f"s_lshl_b32 s{sWQB}, s{sWV}, 15"); A("s_lshl_b32 s7, s3, 10"); A(f"s_add_u32 s{sWQB}, s{sWQB}, s7")
        if g.rot:
            A("s_mul_i32 s7, s6, 37"); A("s_lshr_b32 s7, s7, 8"); A("s_mul_i32 s7, s7, 7"); A("s_sub_u32 s7, s6, s7"); A(f"s_lshl_b32 s{sRHO}, s7, 7")
        else: A(f"s_mov_b32 s{sRHO}, 0")
        for i in range(1, 7):
            A(f"s_add_u32 s7, s{sRHO+i-1}, 128"); A(f"s_cmp_eq_u32 s7, 896"); A(f"s_cselect_b32 s{sRHO+i}, 0, s7")
        A("v_lshrrev_b32 v5, 3, v2"); A(f"s_lshl_b32 s7, s{sWV}, 5"); A("v_add_u32 v5, s7, v5")
        A("v_lshrrev_b32 v6, 4, v2"); A("v_and_b32 v7, 7, v2"); A("v_xor_b32 v6, v6, v7"); A("v_lshlrev_b32 v6, 4, v6")
        A("s_mul_i32 s7, s6, 100352")
        A("v_add_u32 v6, s7, v6")
        for k in range(4):
            A(f"v_add_u32 v7, {8*k}, v5"); A("v_min_u32 v7, 111, v7"); A("v_mul_u32_u24 v7, 896, v7")
            if k & 1: A("v_xor_b32 v8, 64, v6"); A(f"v_add_u32 v{XD+k}, v7, v8")
            else: A(f"v_add_u32 v{XD+k}, v7, v6")
            if k: A(f"v_subrev_u32 v{XD+k}, {k*1024}, v{XD+k}")
        A("v_lshlrev_b32 v5, 2, v3"); A("v_xor_b32 v5, v4, v5"); A("v_lshlrev_b32 v5, 4, v5")
        A(f"v_lshl_add_u32 v{WD}, v3, 13, v5"); A(f"v_xor_b32 v{WD+1}, 0x80, v{WD}"); A(f"v_add_u32 v{WD+1}, {2*8192-1024}, v{WD+1}")
        A(f"v_lshl_add_u32 v{VD}, v3, 9, v5"); A(f"v_xor_b32 v{VD+1}, 0x80, v{VD}")
        A("s_waitcnt lgkmcnt(0)")
        def srd(d, src, n):
            A(f"s_mov_b32 s{d}, s{src}"); A(f"s_mov_b32 s{d+1}, s{src+1}"); A(f"s_mov_b32 s{d+2}, {n}"); A(f"s_mov_b32 s{d+3}, 0x20000")
        g.srd = srd
        srd(sX, 84, 16*112*896); srd(sWQ, 90, 448*8192)

    def addr_setup(g):
        A = g.A; srd = g.srd
        srd(sK, 86, 1 << 26); srd(sV, 88, 1 << 26); srd(sWO, 92, 4096*896); srd(sWS, 94, 256*100352 + (1 << 20 if (g.stamps or g.dbg or g.rs) else 0))
        if g.rs: srd(sDB, 82, 256)
        A(f"s_lshl_b32 s{sWOB}, s3, 9"); A(f"s_lshl_b32 s7, s{sWV}, 4"); A(f"s_add_u32 s{sWOB}, s{sWOB}, s7"); A(f"s_mul_i32 s{sWOB}, s{sWOB}, 896")
        A(f"s_mul_i32 s{sST}, s2, 100352")
        A(f"s_mov_b32 s{sC}, {f2u(math.log2(math.e)/16.0):#x}")
        A(f"s_mov_b32 s{sK0}, {f2u(g.thr_log2*16.0/math.log2(math.e)):#x}")
        A(f"s_mov_b32 s{sFLAG}, 0")
        A(f"s_lshl_b32 s7, s{sWV}, 2"); A("v_add_u32 v5, s7, v3"); A("v_xor_b32 v5, v4, v5"); A("v_lshlrev_b32 v5, 4, v5")
        A(f"v_lshl_add_u32 v{KD}, v3, 9, v5"); A(f"v_xor_b32 v{KD+1}, 32, v{KD}")
        A("v_bfe_u32 v5, v4, 1, 3"); A("v_xor_b32 v5, v5, v3"); A("v_lshlrev_b32 v5, 4, v5"); A(f"v_lshl_add_u32 v{XR}, v4, 7, v5")
        A(f"v_add_u32 v{XR}, s{sLX}, v{XR}"); A(f"v_add_u32 v{XR}, 0x8000, v{XR}")
        for s in range(1, 4): A(f"v_xor_b32 v{XR+s}, {s<<5}, v{XR}")
        A("v_and_b32 v5, 15, v4"); A("v_xor_b32 v5, v5, v3"); A("v_lshlrev_b32 v5, 4, v5"); A(f"v_lshl_add_u32 v{KA}, v4, 9, v5")
        for s in range(1, 8): A(f"v_xor_b32 v{KA+s}, {s<<5}, v{KA}")
        A("v_bfe_u32 v5, v2, 2, 2")
        A("v_lshlrev_b32 v6, 9, v5"); A("v_lshl_add_u32 v6, v5, 6, v6")
        A("v_and_b32 v7, 16, v2"); A("v_lshl_add_u32 v6, v7, 1, v6")
        A("v_and_b32 v7, 3, v2")
        A(f"v_lshl_add_u32 v{VA}, v7, 3, v6"); A(f"v_lshl_add_u32 v{VA}, v3, 11, v{VA}"); A(f"v_add_u32 v{VA}, 0x10000, v{VA}")
        for s in range(1, 4): A(f"v_xor_b32 v{VA+s}, {s<<6}, v{VA}")
        A("v_and_b32 v8, 1, v2"); A("v_lshlrev_b32 v8, 4, v8"); A("v_and_b32 v9, 2, v2"); A("v_lshl_add_u32 v8, v9, 2, v8")
        A(f"v_add_u32 v{WA}, v6, v8"); A(f"v_lshl_add_u32 v{WA}, v3, 12, v{WA}"); A(f"v_add_u32 v{WA}, 0x18000, v{WA}")
        for s in range(1, 4): A(f"v_xor_b32 v{WA+s}, {s<<6}, v{WA}")
        g.base = {"K": 0, "V": 4 * 16384, "W": 6 * 16384}

    def emit_read(g, op, fr):
        A = g.A
        slot = g.where[op["tile"]]
        for n, (kind, aset, ai, imm) in enumerate(op["reads"]):
            tgt = slot * 16384
            if not (g.base[aset] <= tgt and tgt + 16383 - g.base[aset] <= 65535):
                nb = {"K": 0, "V": 4 * 16384, "W": 6 * 16384}[aset]
                if not (nb <= tgt and tgt + 16383 - nb <= 65535): nb = (slot // 4) * 4 * 16384 if slot < 8 else 6 * 16384
                rb, cnt = {"K": (KA, 8), "V": (VA, 4), "W": (WA, g.wcnt)}[aset]
                for r in range(cnt): A(f"v_add_u32 v{rb+r}, {(nb - g.base[aset]) & 0xffffffff:#x}, v{rb+r}")
                g.base[aset] = nb
            off = tgt + imm - g.base[aset]
            ar = {"K": KA, "V": VA, "W": WA}[aset] + ai
            if kind == "b128": A(f"ds_read_b128 {R(fr[0], fr[1], 4)}, v{ar} offset:{off}")
            else: A(f"ds_read_b64_tr_b16 {R(fr[0], fr[1]+2*n, 2)}, v{ar} offset:{off}")
            g.nrd += 1
        op["rd_last"] = g.nrd - 1

    def emit_main(g):
        A = g.A
        ops, steps = g.ops, g.steps
        N = len(ops)
        g.wcnt = 4
        vm = [("pf", 0)] * getattr(g, "pre_vm", 0)
        def vmit(L, key):
            for l in L:
                if not (g.nodma and l.startswith("buffer_load")): A(l)
            vm.append(key)
        for t in g.plan[-1]:
            for L, key in g.dma_pieces(t): vmit(L, key)
        g.addr_setup()
        bpos = {}
        for n, s in enumerate(steps): bpos[max(0, s["first"] - g.boff)] = n
        bp = {n: p for p, n in bpos.items()}
        load = [0.0] * (N + 2)
        for i, op in enumerate(ops):
            p = max(i - g.dist, bp[op["step"]])
            load[p] += len(op["reads"]); load[i] += 0.5 if g.pair else 1
        for p in bpos: load[p] += 2
        for p, L in g.fill.items(): load[p] += cost(L)
        dma_at = {}
        last_wq_pos = 0; first_wo_pos = None
        for n, s in enumerate(steps):
            Pc = [x for t in g.plan[n] for x in g.dma_pieces(t)]
            if not Pc: continue
            p0 = bp[n] + 1
            p1 = (bp[n + 1] - 1) if n + 1 < len(steps) else N - 1
            w = [g.qkw if (p + g.dist < N and ops[min(N - 1, p + 2)]["tile"][0] == "K") else 1.0 for p in range(p0, p1 + 1)]
            tot = sum(w); acc = 0.0; k = 0
            for idx, p in enumerate(range(p0, p1 + 1)):
                while k < len(Pc) and (k + 0.0) * tot / len(Pc) <= acc + 1e-9:
                    x = Pc[k]; k += 1
                    dma_at.setdefault(p, []).append(x); load[p] += len(x[0]) + 1
                    if x[1][0][0] == "q": last_wq_pos = p
                    if x[1][0][0] == "o" and first_wo_pos is None: first_wo_pos = p
                acc += w[idx]
            assert k == len(Pc)
        assert first_wo_pos > last_wq_pos + 1, (first_wo_pos, last_wq_pos)
        g.fill.setdefault(last_wq_pos + 1, []).insert(0, g.wo_d); load[last_wq_pos + 1] += len(g.wo_d)
        last_wq_op = max(i for i, o in enumerate(ops) if o["tile"][0] == "q")
        wo_r_pos = last_wq_op + 6; load[wo_r_pos] += len(g.wo_r)
        for instrs, p0, p1 in g.streams:
            C = sum(cost(x) for x in instrs)
            lo, hi = 0.0, 400.0
            for _ in range(40):
                mid = (lo + hi) / 2
                if sum(max(0.0, mid - load[p]) for p in range(p0, p1 + 1)) >= C: hi = mid
                else: lo = mid
            cap = [max(0.0, hi - load[p]) for p in range(p0, p1 + 1)]
            cum = 0.0; used = 0.0; k = 0
            for idx, p in enumerate(range(p0, p1 + 1)):
                cum += cap[idx]
                while k < len(instrs) and (used + cost(instrs[k]) / 2.0 <= cum + 1e-6 or p == p1):
                    g.fill.setdefault(p, []).append(instrs[k]); c = cost(instrs[k]); used += c; load[p] += c; k += 1
        g.load = load
        g.nrd = 0; rd_done = -1; next_rd = 0
        stamp_i = 1
        for i in range(N + 1):
            if g.cst and i in g.cst:
                k = g.cst.index(i); A(f"s_memtime s[{sSTAMP+2*k}:{sSTAMP+2*k+1}]")
            if i in bpos:
                n = bpos[i]; s = steps[n]
                if g.stamps and not g.cst and s["name"] in (("wq0_0", "a0", "a16", "wo1_6_0") if g.fuse else ("wq0_0", "a0", "a8", "a16", "a24", "wo1_6_0")):
                    A(f"s_memrealtime s[{sSTAMP+2*stamp_i}:{sSTAMP+2*stamp_i+1}]"); A(f"s_memtime s[{84+2*stamp_i}:{85+2*stamp_i}]"); stamp_i += 1
                last = max(vm.index((t, 3)) for t in s["tiles"])
                pub = None
                if g.rs and s["first"] in g.pos and g.pos.index(s["first"]) >= g.publag:
                    pub = g.pos.index(s["first"]) - g.publag
                    sts = [ix for ix, kk in enumerate(vm) if kk[0] == "st4"]
                    assert len(sts) >= 4 * (pub + 1), (len(sts), pub)
                    last = max(last, sts[4 * pub + 3])
                cnt = min(63, len(vm) - 1 - last)
                if g.nowait: cnt = 63
                A(f"; ---- step {n} {s['name']}")
                A(f"s_waitcnt vmcnt({cnt}) lgkmcnt(0)"); rd_done = g.nrd - 1
                A("s_barrier")
                if pub is not None:
                    A(f"s_add_u32 s5, s{sFB}, s{sRHO+g.seq[pub]}")
                    A(f"buffer_store_dword v{KA+1}, v{KA}, s[{sWS}:{sWS+3}], s5 offen sc1"); vm.append(("fl", pub))
                for t in s["tiles"]:
                    if t[0] == "x":
                        for ks in range(4):
                            A(f"ds_read_b128 {R('a', XA + 16*t[2] + 4*ks, 4)}, v{XR+ks} offset:{(g.where[t]-2)*16384}"); g.nrd += 1
            if i == wo_r_pos:
                for l in g.wo_r: A(l)
                g.base["W"] = 0; g.wcnt = 2
            while next_rd < N and next_rd <= i + g.dist and bp[ops[next_rd]["step"]] <= i:
                g.emit_read(ops[next_rd], FR[next_rd % len(FR)]); next_rd += 1
            for L, key in dma_at.get(i, []): vmit(L, key)
            for l in flat(g.fill.get(i, [])):
                if l.startswith("@VM "): A(l[4:]); vm.append(("st4" if "dwordx4" in l else "st", len(vm)))
                else: A(l)
            if i == N: break
            op = ops[i]
            if op["rd_last"] > rd_done:
                tgt = op["rd_last"]
                if g.pair and i + 1 < next_rd and i + 3 < next_rd: tgt = ops[i + 1]["rd_last"]
                c = g.nrd - 1 - tgt
                assert c <= 15
                A(f"s_waitcnt lgkmcnt({c})"); rd_done = tgt
            fr = FR[i % len(FR)]
            D = R(op["D"][0], op["D"][1], 16)
            A(f"v_mfma_f32_32x32x16_bf16 {D}, {R(fr[0], fr[1], 4)}, {R(op['B'][0], op['B'][1], 4)}, {'0' if op['zero'] else D}")

    def fused_reduce(g):
        A = g.A
        A(f"v_mbcnt_lo_u32_b32 v200, -1, 0"); A(f"v_mbcnt_hi_u32_b32 v200, -1, v200")
        A(f"s_lshl_b32 s7, s{sWV}, 6"); A("v_add_u32 v200, s7, v200")
        A("s_and_b32 s3, s2, 7"); A("s_bfe_u32 s6, s2, 0x40003"); A("s_lshr_b32 s4, s2, 7")
        A("s_mov_b32 s5, 2341")
        A("s_mul_i32 s7, s3, 448")
        for r in range(4):
            i, th, rem, lo, so = 201, 202, 203, 208 + r, 212 + r
            A(f"v_add_u32 v{i}, {256*r}, v200")
            A(f"v_mul_u32_u24 v{th}, s5, v{i}"); A(f"v_lshrrev_b32 v{th}, 16, v{th}")
            A(f"v_mul_u32_u24 v{rem}, 28, v{th}"); A(f"v_sub_u32 v{rem}, v{i}, v{rem}")
            A(f"v_mul_u32_u24 v{lo}, 3584, v{th}"); A(f"v_lshl_add_u32 v{lo}, v{rem}, 4, v{lo}"); A(f"v_add_u32 v{lo}, s7, v{lo}")
            A(f"v_lshrrev_b32 v{so}, 1, v{rem}"); A(f"v_mul_u32_u24 v{so}, 1792, v{so}"); A(f"v_lshl_add_u32 v{so}, v{th}, 5, v{so}")
            A(f"v_and_b32 v{rem}, 1, v{rem}"); A(f"v_lshl_add_u32 v{so}, v{rem}, 3, v{so}")
            if r == 3:
                A(f"v_cmp_lt_u32 vcc, 783, v{i}"); A(f"v_bfrev_b32 v{th}, 1"); A("s_nop 0")
                A(f"v_cndmask_b32 v{lo}, v{lo}, v{th}, vcc"); A(f"v_cndmask_b32 v{so}, v{so}, v{th}, vcc")
        A("s_mov_b32 s8, s80"); A("s_mov_b32 s9, s81"); A(f"s_mov_b32 s10, {16*112*896*2}"); A("s_mov_b32 s11, 0x20000")
        A("s_mov_b32 s12, s82"); A("s_mov_b32 s13, s83"); A("s_mov_b32 s14, 256"); A("s_mov_b32 s15, 0x20000")
        A("s_lshr_b32 s16, s2, 3"); A("s_mul_i32 s17, s16, 802816")
        A("s_lshl_b32 s16, s16, 2")
        A("s_mul_i32 s18, s6, 112"); A("s_mul_i32 s19, s3, 14"); A("s_add_u32 s18, s18, s19"); A("s_mul_i32 s18, s18, 1792")
        A("s_mul_i32 s19, s4, 896"); A("s_add_u32 s18, s18, s19")
        A("v_mov_b32 v204, 0"); A("v_mov_b32 v205, 1")
        A("s_waitcnt vmcnt(0)"); A("s_barrier")
        A(f"s_cmp_lg_u32 s{sWV}, 0"); A("s_cbranch_scc1 L_wait")
        A("s_mov_b64 exec, 1")
        A("buffer_atomic_add v205, v204, s[12:15], s16 offen sc1")
        A("s_mov_b32 s20, 0x100000")
        A("L_poll:")
        A("buffer_load_dword v206, v204, s[12:15], s16 offen sc1")
        A("s_waitcnt vmcnt(0)")
        A("v_readfirstlane_b32 s21, v206")
        A("s_sub_u32 s20, s20, 1"); A("s_cbranch_scc1 L_pdone")
        A("s_cmp_lt_u32 s21, 8"); A("s_cbranch_scc1 L_poll")
        A("L_pdone:")
        A("s_mov_b64 exec, -1")
        A("L_wait:")
        A("s_barrier")
        if g.stamps and not g.cst: A(f"s_memrealtime s[{sSTAMP+12}:{sSTAMP+13}]"); A("s_memtime s[96:97]")
        for r in range(4):
            for p in range(8):
                if p == 0: A("s_mov_b32 s19, s17")
                else: A("s_add_u32 s19, s19, 100352")
                d = 32 * r + 4 * p
                A(f"buffer_load_dwordx4 v[{d}:{d+3}], v{208+r}, s[{sWS}:{sWS+3}], s19 offen sc1")
        nst = 0
        for r in range(4):
            acc = 128 + 16 * r
            for p in range(8):
                A(f"s_waitcnt vmcnt({31 - (8*r+p) + nst})")
                for d in range(4):
                    src = 32 * r + 4 * p + d
                    if p == 0:
                        A(f"v_lshlrev_b32 v{acc+2*d}, 16, v{src}"); A(f"v_and_b32 v{acc+1+2*d}, 0xffff0000, v{src}")
                    else:
                        A(f"v_lshlrev_b32 v201, 16, v{src}"); A(f"v_and_b32 v202, 0xffff0000, v{src}")
                        A(f"v_add_f32 v{acc+2*d}, v{acc+2*d}, v201"); A(f"v_add_f32 v{acc+1+2*d}, v{acc+1+2*d}, v202")
            for d in range(4): A(f"v_cvt_pk_bf16_f32 v{acc+8+d}, v{acc+2*d}, v{acc+1+2*d}")
            A(f"buffer_store_dwordx2 v[{acc+8}:{acc+9}], v{212+r}, s[8:11], s18 offen")
            A(f"buffer_store_dwordx2 v[{acc+10}:{acc+11}], v{212+r}, s[8:11], s18 offen offset:16")
            nst += 2

    def rs_tail(g):
        A = g.A
        seq = g.seq
        A("s_and_b32 s3, s2, 7")
        A("s_cmp_eq_u32 s3, 7"); A("s_cbranch_scc1 L_wg7")
        A("s_lshl_b32 s16, s3, 7"); A(f"s_add_u32 s16, s16, s{sFB}")
        A(f"buffer_load_dword v{KA+3}, v{KA+2}, s[{sWS}:{sWS+3}], s16 offen sc1")
        A("s_mov_b32 s8, s80"); A("s_mov_b32 s9, s81"); A(f"s_mov_b32 s10, {16*112*896*2}"); A("s_mov_b32 s11, 0x20000")
        A(f"v_lshrrev_b32 v{T0}, 5, v{XV}"); A(f"v_mul_u32_u24 v{T0}, 1792, v{T0}"); A(f"v_and_b32 v{T1}, 0x80000010, v{XV}"); A(f"v_add_u32 v{KA+4}, v{T0}, v{T1}")
        A("s_bfe_u32 s6, s2, 0x40003"); A("s_mul_i32 s18, s6, 200704"); A("s_lshr_b32 s4, s2, 7"); A("s_mul_i32 s4, s4, 896"); A("s_add_u32 s18, s18, s4")
        A("s_lshl_b32 s4, s3, 7"); A("s_add_u32 s18, s18, s4")
        A("s_and_b32 s17, s2, 0xf8"); A("s_mul_i32 s17, s17, 100352"); A("s_mul_i32 s4, s3, 14336"); A("s_add_u32 s17, s17, s4")
        A("s_mov_b32 s20, 0x40000")
        def publish(k):
            A(f"s_add_u32 s5, s{sFB}, s{sRHO+seq[k]}")
            A(f"buffer_store_dword v{KA+1}, v{KA}, s[{sWS}:{sWS+3}], s5 offen sc1")
        if g.publag == 3:
            A("s_waitcnt vmcnt(6)"); A("s_barrier"); publish(4); A("s_waitcnt vmcnt(1)")
        else: A("s_waitcnt vmcnt(0)")
        A("s_barrier"); publish(5)
        if g.stamps and not g.cst: A(f"s_memrealtime s[{sSTAMP+12}:{sSTAMP+13}]"); A("s_memtime s[96:97]")
        A(f"v_cmp_ne_u32 vcc, 0, v{KA+3}"); A("s_mov_b32 s21, s3"); A("s_nop 0"); A("s_mov_b32 s22, vcc_lo")
        def getld(k):
            if k < 6:
                A("s_sub_u32 s21, s21, 1"); A("s_cselect_b32 s21, 6, s21")
            else: A("s_mov_b32 s21, 7")
            A(f"L_w{k}:")
            A("s_bitcmp1_b32 s22, s21"); A(f"s_cbranch_scc1 L_ok{k}")
            A(f"buffer_load_dword v{KA+3}, v{KA+2}, s[{sWS}:{sWS+3}], s16 offen sc1"); A("s_waitcnt vmcnt(0)")
            A(f"v_cmp_ne_u32 vcc, 0, v{KA+3}"); A("s_sub_u32 s20, s20, 1"); A("s_cselect_b32 s22, -1, vcc_lo")
            A(f"s_branch L_w{k}")
            A(f"L_ok{k}:")
            A("s_mul_i32 s19, s21, 100352"); A("s_add_u32 s19, s19, s17")
            for u in range(4):
                d = 32 + 16 * k + 4 * u
                A(f"buffer_load_dwordx4 v[{d}:{d+3}], v{XV}, s[{sWS}:{sWS+3}], s19 offen sc1")
                if u < 3: A("s_add_u32 s19, s19, 3584")
        def add(k, after):
            for u in range(4):
                A(f"s_waitcnt vmcnt({after + 3 - u})")
                for d in range(4):
                    src = 32 + 16 * k + 4 * u + d; a = 8 * u + 2 * d
                    A(f"v_lshlrev_b32 v{T0}, 16, v{src}"); A(f"v_and_b32 v{T1}, 0xffff0000, v{src}")
                    A(f"v_add_f32 v{a}, v{a}, v{T0}"); A(f"v_add_f32 v{a+1}, v{a+1}, v{T1}")
        for k in range(4): getld(k)
        A(f"buffer_load_dword v{KA+3}, v{KA+2}, s[{sWS}:{sWS+3}], s16 offen sc1")
        for k in range(4): add(k, 1 + 4 * (3 - k))
        A("s_waitcnt vmcnt(0)")
        A(f"v_cmp_ne_u32 vcc, 0, v{KA+3}"); A("s_nop 1"); A("s_or_b32 s22, s22, vcc_lo")
        for k in range(4, 7): getld(k)
        for k in range(4, 7): add(k, 4 * (6 - k))
        for u in range(4):
            for d in range(4): A(f"v_cvt_pk_bf16_f32 v{32+4*u+d}, v{8*u+2*d}, v{8*u+2*d+1}")
            A(f"v_permlane32_swap_b32 v{32+4*u}, v{32+4*u+2}"); A(f"v_permlane32_swap_b32 v{32+4*u+1}, v{32+4*u+3}")
            A(f"buffer_store_dwordx4 v[{32+4*u}:{35+4*u}], v{KA+4}, s[8:11], s18 offen offset:{32*u}")
        A("s_branch L_fin")
        A("L_wg7:")
        A("s_nop 15")
        for l in flat(g.last_epi): A(l[4:] if l.startswith("@VM ") else l)
        A("s_waitcnt vmcnt(4)"); A("s_barrier")
        if g.publag == 3: publish(4)
        publish(5)
        A(f"s_waitcnt vmcnt({2 if g.publag == 3 else 1})"); A("s_barrier")
        publish(6)
        if g.stamps and not g.cst: A(f"s_memrealtime s[{sSTAMP+12}:{sSTAMP+13}]"); A("s_memtime s[96:97]")
        A("L_fin:")

    def rare(g):
        A = g.A
        if g.rs:
            A("L_hs:")
            A("s_mov_b32 s63, 0x40000"); A("s_lshr_b32 s5, s2, 3"); A("s_lshl_b32 s5, s5, 2"); A(f"v_mov_b32 v{T0}, 0")
            A("L_hs2:")
            A(f"buffer_load_dword v{T1}, v{T0}, s[{sDB}:{sDB+3}], s5 offen sc1"); A("s_waitcnt vmcnt(0)")
            A(f"v_readfirstlane_b32 s7, v{T1}")
            A("s_sub_u32 s63, s63, 1"); A("s_cbranch_scc1 L_hsb")
            A("s_cmp_lt_u32 s7, 32"); A("s_cbranch_scc1 L_hs2")
            A("s_branch L_hsb")
        for la, fn, lb in g.stubs:
            A(f"{la}:"); A(f"s_call_b64 s[{sRET}:{sRET+1}], {fn}"); A(f"s_branch {lb}")
        A("L_newmax:")
        A(f"v_mov_b32 v{TB}, v{TA}"); A(f"v_permlane32_swap_b32 v{TA}, v{TB}")
        A(f"v_max3_f32 v{M}, v{TA}, v{TB}, v{M}")
        A(f"v_mul_f32 v{TA}, s{sC}, v{M}")
        A(f"v_sub_f32 v{TB}, v{MC}, v{TA}"); A(f"v_exp_f32 v{TB}, v{TB}")
        A(f"v_mov_b32 v{MC}, v{TA}"); A(f"v_add_f32 v{THR}, s{sK0}, v{M}")
        A(f"v_mul_f32 v{LA}, v{LA}, v{TB}"); A(f"v_mul_f32 v{LB}, v{LB}, v{TB}")
        A(f"s_mov_b32 s{sFLAG}, 1")
        A(f"s_setpc_b64 s[{sRET}:{sRET+1}]")
        A("L_rescale:")
        A("s_nop 15")
        for r in range(128): A(f"v_mul_f32 v{OACC+r}, v{OACC+r}, v{TB}")
        A(f"s_mov_b32 s{sFLAG}, 0")
        A("s_nop 1")
        A(f"s_setpc_b64 s[{sRET}:{sRET+1}]")

    def reduce_kernel(g):
        L = []; A = L.append
        A("s_cmp_ge_u32 s2, 784"); A("s_cbranch_scc1 L_rend")
        A("s_load_dwordx2 s[4:5], s[0:1], 80"); A("s_load_dwordx2 s[6:7], s[0:1], 96")
        A("v_lshrrev_b32 v1, 6, v0"); A("v_readfirstlane_b32 s3, v1")
        A("s_lshl_b32 s16, s2, 2"); A("s_add_u32 s16, s16, s3")
        A(f"s_mul_i32 s17, s16, {math.ceil(2**20/98)}"); A("s_lshr_b32 s17, s17, 20")
        A("s_mul_i32 s18, s17, 98"); A("s_sub_u32 s18, s16, s18")
        A(f"s_mul_i32 s19, s18, {math.ceil(2**16/7)}"); A("s_lshr_b32 s19, s19, 16")
        A("s_mul_i32 s20, s19, 7"); A("s_sub_u32 s20, s18, s20")
        A("v_and_b32 v2, 15, v0"); A("v_bfe_u32 v3, v0, 4, 2")
        A("v_mul_u32_u24 v4, 3584, v3"); A("v_lshl_add_u32 v4, v2, 4, v4")
        A("s_mul_i32 s21, s17, 802816"); A("s_mul_i32 s22, s20, 14336"); A("s_add_u32 s21, s21, s22"); A("s_lshl_b32 s22, s19, 8"); A("s_add_u32 s21, s21, s22")
        A("s_waitcnt lgkmcnt(0)")
        A("s_mov_b32 s8, s6"); A("s_mov_b32 s9, s7"); A(f"s_mov_b32 s10, {256*100352}"); A("s_mov_b32 s11, 0x20000")
        A("s_mov_b32 s12, s4"); A("s_mov_b32 s13, s5"); A(f"s_mov_b32 s14, {16*112*896*2}"); A("s_mov_b32 s15, 0x20000")
        for p in range(8):
            A(f"buffer_load_dwordx4 v[{8+4*p}:{11+4*p}], v4, s[8:11], s21 offen {g.rdpol}".rstrip())
            if p < 7: A("s_add_u32 s21, s21, 100352")
        A("v_lshrrev_b32 v5, 1, v2"); A("v_mul_u32_u24 v5, 1792, v5"); A("v_lshl_add_u32 v5, v3, 5, v5"); A("v_and_b32 v6, 1, v2"); A("v_lshl_add_u32 v5, v6, 3, v5")
        A("s_and_b32 s22, s17, 15"); A("s_mul_i32 s22, s22, 112"); A("s_lshl_b32 s23, s19, 3"); A("s_add_u32 s22, s22, s23"); A("s_mul_i32 s22, s22, 1792")
        A("s_lshr_b32 s23, s17, 4"); A("s_mul_i32 s23, s23, 896"); A("s_add_u32 s22, s22, s23"); A("s_lshl_b32 s23, s20, 7"); A("s_add_u32 s22, s22, s23")
        for p in range(8):
            A(f"s_waitcnt vmcnt({7-p})")
            for d in range(4):
                src = 8 + 4 * p + d
                if p == 0:
                    A(f"v_lshlrev_b32 v{40+2*d}, 16, v{src}"); A(f"v_and_b32 v{41+2*d}, 0xffff0000, v{src}")
                else:
                    A(f"v_lshlrev_b32 v6, 16, v{src}"); A(f"v_and_b32 v7, 0xffff0000, v{src}")
                    A(f"v_add_f32 v{40+2*d}, v{40+2*d}, v6"); A(f"v_add_f32 v{41+2*d}, v{41+2*d}, v7")
        for d in range(4): A(f"v_cvt_pk_bf16_f32 v{48+d}, v{40+2*d}, v{41+2*d}")
        A("buffer_store_dwordx2 v[48:49], v5, s[12:15], s22 offen")
        A("buffer_store_dwordx2 v[50:51], v5, s[12:15], s22 offen offset:16")
        A("L_rend:"); A("s_endpgm")
        return fix_hazards(L)[0]

    def generate(g):
        if g.rs: g.fuse = True
        if g.fuse: g.stpol = "sc1"
        g.build_program(); g.schedule_dma()
        if g.fuse: g.stpol = "sc1"
        g.build_program_done = True
        g.prologue(); g.emit_main()
        A = g.A
        if g.fuse:
            if g.stamps and not g.cst: A(f"s_memrealtime s[{sSTAMP+10}:{sSTAMP+11}]"); A("s_memtime s[94:95]")
            g.rs_tail() if g.rs else g.fused_reduce()
        if g.stamps:
            A("s_waitcnt vmcnt(0)")
            if not g.cst: A(f"s_memrealtime s[{sSTAMP+14}:{sSTAMP+15}]"); A("s_memtime s[98:99]")
            A("s_waitcnt lgkmcnt(0)")
            for i in range(8): A(f"v_mov_b32 v{i}, s{sSTAMP+2*i}")
            for i in range(8): A(f"v_mov_b32 v{12+i}, s{84+2*i}")
            A(f"s_lshl_b32 s3, s2, 5"); A(f"s_add_u32 s3, s3, {256*100352+0x10000}"); A("v_mov_b32 v8, 0"); A("v_mov_b32 v9, 0x2000")
            A(f"s_cmp_lg_u32 s{sWV}, 0"); A("s_cbranch_scc1 L_end")
            A(f"buffer_store_dwordx4 v[0:3], v8, s[{sWS}:{sWS+3}], s3 offen"); A(f"buffer_store_dwordx4 v[4:7], v8, s[{sWS}:{sWS+3}], s3 offen offset:16")
            A(f"buffer_store_dwordx4 v[12:15], v9, s[{sWS}:{sWS+3}], s3 offen"); A(f"buffer_store_dwordx4 v[16:19], v9, s[{sWS}:{sWS+3}], s3 offen offset:16")
        A("L_end:"); A("s_endpgm")
        g.rare()
        body, nops = fix_hazards(g.L)
        g.nops = nops
        hdr = open("cdna_kernels/" + NAME + ".s.ref").read().split("; Override launch")[0]
        o = [hdr.rstrip()]
        if g.fuse: o.append(f"; @launch grid=(256,1,1) block=(256,1,1) lds=163840")
        else: o.append(f"; @launch kernel={NAME}_kernel grid=(256,1,1) block=(256,1,1) lds=163840")
        if not g.noreduce and not g.fuse: o.append(f"; @launch kernel=reduce_kernel grid=(784,1,1) block=(256,1,1) lds=0")
        o += ['.amdgcn_target "amdgcn-amd-amdhsa--gfx950"', ".text"]
        if not g.fuse:
            o += [".globl reduce_kernel", ".p2align 8", ".type reduce_kernel,@function", "reduce_kernel:"]
            o += g.reduce_kernel()
        o += [f".globl {NAME}_kernel", ".p2align 8", f".type {NAME}_kernel,@function", f"{NAME}_kernel:"]
        o += body
        o += ["L_codeend:", f".set CODE_BYTES, L_end - {NAME}_kernel - 256"]
        def kd(n, v, acc, s):
            return [".p2align 6", f".amdhsa_kernel {n}", f"  .amdhsa_next_free_vgpr {v}", f"  .amdhsa_next_free_sgpr {s}", f"  .amdhsa_accum_offset {acc}",
                    "  .amdhsa_group_segment_fixed_size 0", "  .amdhsa_kernarg_size 104", "  .amdhsa_user_sgpr_count 2",
                    "  .amdhsa_user_sgpr_kernarg_segment_ptr 1", "  .amdhsa_system_sgpr_workgroup_id_x 1", ".end_amdhsa_kernel"]
        o += ['.section .rodata,"a"'] + kd(NAME + "_kernel", 512, 256, 102) + ([] if g.fuse else kd("reduce_kernel", 56, 56, 32))
        return "\n".join(o) + "\n"

if __name__ == "__main__":
    out = sys.argv[1] if len(sys.argv) > 1 else "k.s"
    kw = {}; verbose = False
    for a in sys.argv[2:]:
        if a == "-v": verbose = True; continue
        k, v = a.split("=", 1)
        try: v = eval(v)
        except Exception: pass
        kw[k] = v
    g = Gen(**kw)
    txt = g.generate()
    open(out, "w").write(txt)
    print(out, "bytes", len(txt), "lines", txt.count("\n"), "nops", g.nops)
    if verbose:
        for n in range(-1, len(g.steps)):
            f = g.steps[n]["first"] if n >= 0 else 0
            e = g.steps[n + 1]["first"] if n + 1 < len(g.steps) else len(g.ops)
            print(n, g.steps[n]["name"] if n >= 0 else "pro", f, [("".join(map(str, t)), g.where[t]) for t in g.plan[n]], " ".join(f"{x:.0f}" for x in g.load[f:e]) if n >= 0 else "")
```

```python
import sys, math, struct
from asmlib import fix_hazards
NAME = "concat_heads__mha_block_cached__gqa_block_cached__near_ridge"

def f2u(x): return struct.unpack("<I", struct.pack("<f", x))[0]

OACC = 0; QF = 128; S = 192; P = 208
FR = [("v", 216), ("a", 240), ("a", 244), ("v", 220), ("a", 248), ("a", 252)]
KA = 224; VA = 232; WA = 236
KD = 240; VD = 242; WD = 244
XV = 246; MC = 247; THR = 248; M = 249; LA = 250; LB = 251; TA = 252; TB = 253; T0 = 254; T1 = 255
XD = S; XR = S + 4
XA = 128
O0P = 128
PP = 192
AB = {0: 0, 1: 32, 2: 64, 3: 96, 4: 0, 5: 32, 6: 64}
sK, sV, sWQ, sWO, sX, sWS = 8, 12, 16, 20, 24, 28
sKV, sLW, sWQB, sWOB, sT, sC, sK0, sST = 32, 33, 34, 35, 36, 37, 38, 39
sRHO = 40
sLX = 48; sFLAG = 49
sRET = 56
sWV = 58; sT2 = 60; sT3 = 61; sDB = 52; sFB = 62
sSTAMP = 64

def R(f, b, n=1): return f"{f}{b}" if n == 1 else f"{f}[{b}:{b+n-1}]"
def flat(x):
    for y in x:
        if isinstance(y, list): yield from flat(y)
        else: yield y
def cost(ins):
    c = 0
    for l in flat([ins]):
        if l.endswith(":"): continue
        c += 2 if l.startswith(("v_exp", "v_rcp")) else (0 if l.startswith("s_call") else 1)
    return c

class Gen:
    def __init__(g, kvpol="nt", wpol="", xpol="", stpol="", dist=4, boff=3, stamps=False, pace=0.5, kv0=0, rot=True,
                 thr_log2=8.0, dbg=None, rdpol="", cst=None, nowait=False, nodma=False, pair=True, cpf=True, qkw=2.0, wo1g=2, wslots0=4, xc=(0, 2, 3, 4, 5, 6, 7), npro=7, noreduce=False, fuse=False, rs=False, epi_early=12, publag=3, hs=1, xslots=(5, 4, 3)):
        g.__dict__.update(locals()); del g.__dict__["g"]
        g.L = []
        g.ops = []; g.steps = []; g.fill = {}; g.streams = []
        g.nlab = 0

    def A(g, t): g.L.append(t)

    def add_op(g, tile, reads, B, D, zero):
        g.ops.append(dict(tile=tile, reads=reads, B=B, D=D, zero=zero, step=len(g.steps) - 1))
    def begin_step(g, tiles, name=""):
        g.steps.append(dict(tiles=tiles, first=len(g.ops), name=name))
    def spread(g, instrs, p0, p1):
        g.streams.append((instrs, p0, p1))

    def ops_wq(g, h, i):
        t = ("q", h, i)
        for m in range(2):
            for T in range(8):
                rd = [("tr", "W", T & 3, (16 * m + 4 * tt) * 512 + (T >> 2) * 256) for tt in range(2)]
                D = ("v", OACC + 16 * T) if h == 0 else ("a", 16 * T)
                g.add_op(t, rd, ("a", XA + (2 * i + m) * 4), D, i == 0 and m == 0)
    def ops_qk(g, h, j):
        for s in range(16):
            g.add_op(("K", h, j), [("b128", "K", s & 7, (s >> 3) * 256)], ("v", QF + 4 * s), ("v", S), s == 0)
    def ops_pv(g, h, j):
        for m in range(2):
            for dt in range(8):
                rd = [("tr", "V", dt & 3, (16 * m + 8 * tt) * 512 + (dt >> 2) * 256) for tt in range(2)]
                g.add_op(("V", h, j), rd, ("v", P + 4 * m), ("v", OACC + 16 * dt), j == 0 and m == 0)
    def ops_wo(g, h, grp, u, acc, zero):
        for m in range(8):
            for T in range(2):
                rd = [("tr", "W", T, (16 * m + 8 * tt) * 128) for tt in range(2)]
                ks = 8 * u + m
                B = ("a", O0P + 4 * ks) if h == 0 else ("v", QF + 4 * ks)
                g.add_op(("o", h, 2 * grp + u), rd, B, (acc[0], acc[1] + 16 * T), zero and u == 0 and m == 0)

    def softmax(g, j):
        s = lambda i: f"v{S+i}"
        a = [f"v_max3_f32 v{TA}, {s(0)}, {s(1)}, {s(2)}", f"v_max3_f32 v{TB}, {s(3)}, {s(4)}, {s(5)}",
             f"v_max3_f32 v{TA}, v{TA}, {s(6)}, {s(7)}", f"v_max3_f32 v{TB}, v{TB}, {s(8)}, {s(9)}",
             f"v_max3_f32 v{TA}, v{TA}, {s(10)}, {s(11)}", f"v_max3_f32 v{TB}, v{TB}, {s(12)}, {s(13)}",
             f"v_max3_f32 v{TA}, v{TA}, {s(14)}, {s(15)}", f"v_max_f32 v{TA}, v{TA}, v{TB}"]
        if j == 0:
            a += [f"v_mov_b32 v{TB}, v{TA}", f"v_permlane32_swap_b32 v{TA}, v{TB}", f"v_max_f32 v{M}, v{TA}, v{TB}",
                  f"v_mul_f32 v{MC}, s{sC}, v{M}", f"v_add_f32 v{THR}, s{sK0}, v{M}"]
        else:
            g.nlab += 1
            a += [[f"v_cmp_gt_f32 vcc, v{TA}, v{THR}", f"s_cbranch_vccnz L_ra{g.nlab}", f"L_rb{g.nlab}:"]]
            g.stubs.append((f"L_ra{g.nlab}", "L_newmax", f"L_rb{g.nlab}"))
        f = [f"v_fma_f32 {s(i)}, {s(i)}, s{sC}, -v{MC}" for i in range(16)]
        e = [f"v_exp_f32 {s(i)}, {s(i)}" for i in range(16)]
        ad = []
        for i in range(16):
            l = LA if i % 2 == 0 else LB
            ad.append(f"v_mov_b32 v{l}, {s(i)}" if (j == 0 and i < 2) else f"v_add_f32 v{l}, v{l}, {s(i)}")
        seq = [f[0], f[1]]
        for i in range(16):
            seq.append(e[i])
            if i + 2 < 16: seq.append(f[i + 2])
            if i >= 1: seq.append(ad[i - 1])
        seq.append(ad[15])
        cv = [f"v_cvt_pk_bf16_f32 v{P+i}, {s(2*i)}, {s(2*i+1)}" for i in range(8)]
        return a + seq, cv

    def finish_l(g, dst):
        return [f"v_add_f32 v{LA}, v{LA}, v{LB}", f"v_mov_b32 v{LB}, v{LA}", f"v_permlane32_swap_b32 v{LA}, v{LB}",
                f"v_add_f32 v{LA}, v{LA}, v{LB}", f"v_rcp_f32 v{dst}, v{LA}"]

    def lane_setup_wo(g):
        d = [f"v_mbcnt_lo_u32_b32 v{T0}, -1, 0", f"v_mbcnt_hi_u32_b32 v{T0}, -1, v{T0}",
             f"v_lshrrev_b32 v{T1}, 2, v{T0}", f"v_and_b32 v{T1}, 4, v{T1}", f"v_xor_b32 v{T1}, v{T0}, v{T1}", f"v_and_b32 v{T1}, 7, v{T1}",
             f"v_lshlrev_b32 v{T1}, 4, v{T1}", f"v_lshrrev_b32 v{WD}, 3, v{T0}", f"v_mul_u32_u24 v{WD}, 896, v{WD}", f"v_add_u32 v{WD}, v{WD}, v{T1}",
             f"v_add_u32 v{WD+1}, {8*896-1024}, v{WD}"]
        r = [f"v_mbcnt_lo_u32_b32 v{T0}, -1, 0", f"v_mbcnt_hi_u32_b32 v{T0}, -1, v{T0}",
             f"v_lshrrev_b32 v{WA}, 5, v{T0}", f"v_lshlrev_b32 v{WA}, 9, v{WA}",
             f"v_and_b32 v{T1}, 12, v{T0}", f"v_lshl_add_u32 v{WA}, v{T1}, 5, v{WA}",
             f"v_and_b32 v{T1}, 8, v{T0}", f"v_lshl_add_u32 v{WA}, v{T1}, 3, v{WA}",
             f"v_and_b32 v{T1}, 16, v{T0}", f"v_lshl_add_u32 v{WA}, v{T1}, 1, v{WA}",
             f"v_and_b32 v{T1}, 3, v{T0}", f"v_lshl_add_u32 v{WA}, v{T1}, 3, v{WA}",
             f"v_xor_b32 v{WA+1}, 64, v{WA}"]
        return d, r

    def store_setup(g):
        return [f"v_mbcnt_lo_u32_b32 v{T0}, -1, 0", f"v_mbcnt_hi_u32_b32 v{T0}, -1, v{T0}",
                f"v_and_b32 v{T1}, 31, v{T0}", f"s_lshl_b32 s{sT2}, s{sWV}, 5", f"v_add_u32 v{T1}, s{sT2}, v{T1}",
                f"v_lshrrev_b32 v{T0}, 5, v{T0}", f"v_lshlrev_b32 v{T0}, 4, v{T0}", f"v_lshl_add_u32 v{XV}, v{T1}, 5, v{T0}",
                [f"v_cmp_lt_u32 vcc, 111, v{T1}", f"v_bfrev_b32 v{T0}, 1", "s_nop 0", f"v_cndmask_b32 v{XV}, v{XV}, v{T0}, vcc"]]

    def build_program(g):
        g.stubs = []
        for i in range(14):
            g.begin_step([("q", 0, i)] + [("x", 0, u) for u in range(7) if g.xc[u] == i], name=f"wq0_{i}")
            g.ops_wq(0, i)
        seg = {}
        for t in range(33):
            h, j = t >> 4, t & 15
            hp, jp = (t - 1) >> 4, (t - 1) & 15
            W = None
            if t < 14: W = ("q", 1, t)
            if 17 <= t < 31: W = ("o", 0, t - 17)
            tiles = ([("K", h, j)] if t < 32 else []) + ([("V", hp, jp)] if t >= 1 else []) + ([W] if W else [])
            g.begin_step(tiles, name=f"a{t}")
            p_qk = len(g.ops)
            if t < 32: g.ops_qk(h, j)
            p_pv = len(g.ops)
            if t >= 1: g.ops_pv(hp, jp)
            p_w = len(g.ops)
            if W and t < 14: g.ops_wq(1, t)
            if W and t >= 17:
                grp, u = (t - 17) >> 1, (t - 17) & 1
                g.ops_wo(0, grp, u, ("a", AB[grp]), True)
            seg[t] = (p_qk, p_pv, p_w, len(g.ops))
        g.seg = seg
        for t in range(33):
            p_qk, p_pv, p_w, p_end = seg[t]
            j = t & 15
            if t == 0:
                for T in range(8):
                    cv = [f"v_cvt_pk_bf16_f32 v{QF+8*T+e}, v{OACC+16*T+2*e}, v{OACC+16*T+2*e+1}" for e in range(8)]
                    p = p_qk - 4 + (3 * T) // 2
                    g.spread(cv, p, p + 1)
            if t < 32:
                body, cv = g.softmax(j)
                tail = []
                if j == 15: tail = g.finish_l(XV if t == 15 else THR)
                if j != 0:
                    g.nlab += 1
                    g.fill.setdefault(p_w, []).append([f"s_cmp_lg_u32 s{sFLAG}, 0", f"s_cbranch_scc1 L_ra{g.nlab}", f"L_rb{g.nlab}:"])
                    g.stubs.append((f"L_ra{g.nlab}", "L_rescale", f"L_rb{g.nlab}"))
                if p_end > p_w and p_w > p_pv:
                    g.spread(body, p_pv + 2, p_end - 4); g.spread(cv + tail, p_end - 3, p_end)
                elif p_end > p_pv:
                    if p_w > p_pv:
                        g.spread(body, p_pv + 2, p_end - 1); g.spread(cv + tail, p_end, p_end)
                    else:
                        g.spread(body, p_pv + 2, p_end - 2); g.spread(cv + tail, p_end - 1, p_end)
            if t == 15:
                for T in range(8):
                    o = []
                    for e in range(8):
                        d = QF + 8 * T + e; tt = T0 if e % 2 == 0 else T1
                        o += [f"v_accvgpr_read_b32 v{d}, a{16*T+2*e}", f"v_accvgpr_read_b32 v{tt}, a{16*T+2*e+1}", f"v_cvt_pk_bf16_f32 v{d}, v{d}, v{tt}"]
                    p = p_pv + 1 + (7 * T) // 2
                    g.spread(o, p, p + 2)
            if t == 16:
                nq, npv = seg[17][0], seg[17][1]
                for dt in range(8):
                    o = []
                    for e in range(8):
                        b = OACC + 16 * dt + 2 * e
                        o += [f"v_mul_f32 v{b}, v{b}, v{XV}", f"v_mul_f32 v{b+1}, v{b+1}, v{XV}"]
                    for e in range(8):
                        b = OACC + 16 * dt + 2 * e
                        o += [f"v_cvt_pk_bf16_f32 v{b}, v{b}, v{b+1}"]
                    for e in range(8):
                        b = OACC + 16 * dt + 2 * e
                        o += [f"v_accvgpr_write_b32 a{O0P+8*dt+e}, v{b}"]
                    g.spread(o, nq + 1 + 2 * dt, nq + 2 + 2 * dt)
            if t in (19, 21, 23):
                grp = (t - 19) // 2
                o = []
                for e in range(16):
                    a0 = AB[grp] + 2 * e
                    o += [f"v_accvgpr_read_b32 v{T0}, a{a0}", f"v_accvgpr_read_b32 v{T1}, a{a0+1}", f"v_cvt_pk_bf16_f32 v{T0}, v{T0}, v{T1}",
                          f"v_accvgpr_write_b32 a{PP+16*grp+e}, v{T0}"]
                g.spread(o[:32], p_qk + 2, p_qk + 15)
                g.spread(o[32:], seg[t + 1][0] + 1, seg[t + 1][0] + 15)
            if t == 26:
                g.spread(g.store_setup(), p_qk + 1, p_qk + 12)
        p_last_pv = seg[32][1]
        seq = [6, 5, 0, 4, 1, 3, 2]
        vb = {0: 0, 1: 32, 2: 0}
        stg = {6: 96, 5: 64, 4: 96, 3: 64}
        pos = []
        cnt = 0
        for k, grp in enumerate(seq):
            acc = ("a", AB[grp]) if grp >= 3 else ("v", vb[grp])
            pos.append(len(g.ops))
            for u in range(2):
                if cnt % g.wo1g == 0: g.begin_step([], name=f"wo1_{grp}_{u}")
                cnt += 1
                g.steps[-1]["tiles"].append(("o", 1, 2 * grp + u))
                g.ops_wo(1, grp, u, acc, False)
        pos.append(len(g.ops))
        for dt in range(8):
            o = []
            for half in range(2):
                for e in range(4 * half, 4 * half + 4):
                    b = OACC + 16 * dt + 2 * e
                    o += [f"v_mul_f32 v{b}, v{b}, v{THR}", f"v_mul_f32 v{b+1}, v{b+1}, v{THR}"]
                for e in range(4 * half, 4 * half + 4):
                    b = OACC + 16 * dt + 2 * e
                    o += [f"v_cvt_pk_bf16_f32 v{QF+8*dt+e}, v{b}, v{b+1}"]
            p = pos[0] - 5 + 4 * dt + (1 if dt > 2 else 0)
            g.spread(o, p, p + 3)
        for k, grp in enumerate(seq):
            o = []
            base = stg[grp] if grp >= 3 else vb[grp]
            for T in range(2):
                for half in range(2):
                    for e in range(4 * half, 4 * half + 4):
                        b = base + 16 * T + 2 * e
                        if grp >= 3:
                            a0 = AB[grp] + 16 * T + 2 * e
                            o += [f"v_accvgpr_read_b32 v{b}, a{a0}", f"v_accvgpr_read_b32 v{b+1}, a{a0+1}"]
                        o += [f"v_cvt_pk_bf16_f32 v{base+16*T+e}, v{b}, v{b+1}"]
                    th = (2 * grp + T) * 2 + half
                    if g.rs: pre = [f"s_mul_i32 s{sT3}, s{sRHO+grp}, 112", f"s_add_u32 s{sT3}, s{sT3}, s{sST}"] if (T == 0 and half == 0) else [f"s_add_u32 s{sT3}, s{sT3}, 3584"]
                    else: pre = [f"s_add_u32 s{sT3}, s{sST}, {th*3584}"]
                    o += [pre + [
                           f"@VM buffer_store_dwordx4 {R('v', base+16*T+4*half, 4)}, v{XV}, s[{sWS}:{sWS+3}], s{sT3} offen {g.stpol}".rstrip()]]
            if k + 1 < len(seq):
                nxt2 = seq[k + 2] if k + 2 < len(seq) else None
                g.spread(o, pos[k + 1] + 2, pos[k + 2] - 1 - g.epi_early)
                if nxt2 is not None and nxt2 < 3:
                    o = []
                    for e in range(16):
                        d = vb[nxt2] + 2 * e
                        o += [f"v_accvgpr_read_b32 v{d+1}, a{PP+16*nxt2+e}", f"v_lshlrev_b32 v{d}, 16, v{d+1}", f"v_and_b32 v{d+1}, 0xffff0000, v{d+1}"]
                    g.spread(o, pos[k + 1], pos[k + 2] - 1)
            elif g.rs:
                g.last_epi = o
            else:
                g.spread(o, pos[k + 1], pos[k + 1])
        g.wo_d, g.wo_r = g.lane_setup_wo()
        if g.rs:
            t = ["s_and_b32 s7, s2, 7"]
            for k, grp in enumerate(seq):
                t += ["s_add_u32 s7, s7, 1", "s_sub_u32 s5, s7, 7", "s_cselect_b32 s7, s7, s5", f"s_lshl_b32 s{sRHO+grp}, s7, 7"]
            g.wo_d = g.wo_d + t
            FL = 256 * 100352
            p = g.steps[8]["first"] + 2
            g.fill.setdefault(p, []).append([f"v_mbcnt_lo_u32_b32 v{T0}, -1, 0", f"v_mbcnt_hi_u32_b32 v{T0}, -1, v{T0}", f"v_and_b32 v{T0}, 31, v{T0}", f"v_lshlrev_b32 v{T0}, 2, v{T0}",
                f"v_mov_b32 v{T1}, 0", "s_lshl_b32 s5, s2, 7", f"s_add_u32 s5, s5, {FL}",
                f"@VM buffer_store_dword v{T1}, v{T0}, s[{sWS}:{sWS+3}], s5 offen sc1"])
            p = g.seg[4][0] + 2
            if g.hs: g.fill.setdefault(p, []).append([f"v_mbcnt_lo_u32_b32 v{T0}, -1, 0", f"v_mbcnt_hi_u32_b32 v{T0}, -1, v{T0}"] + ([f"v_add_u32 v{T0}, s{sWV}, v{T0}"] if g.hs == 2 else []) + [f"v_lshlrev_b32 v{T0}, 12, v{T0}",
                f"v_mov_b32 v{T1}, 1", "s_lshr_b32 s5, s2, 3", "s_lshl_b32 s5, s5, 2",
                f"@VM buffer_atomic_add v{T1}, v{T0}, s[{sDB}:{sDB+3}], s5 offen sc1"])
            p = g.seg[29][0] + 2
            if g.hs: g.fill.setdefault(p, []).append([f"v_mov_b32 v{T0}, 0", "s_lshr_b32 s5, s2, 3", "s_lshl_b32 s5, s5, 2",
                f"@VM buffer_load_dword v{T1}, v{T0}, s[{sDB}:{sDB+3}], s5 offen sc1"])
            p = g.seg[32][0] + 1
            g.fill.setdefault(p, []).append(([f"v_readfirstlane_b32 s7, v{T1}", f"s_cmp_lt_u32 s7, {32 if g.hs == 1 else 8}", "s_cbranch_scc1 L_hs"] if g.hs else []) + ["L_hsb:",
                f"v_mbcnt_lo_u32_b32 v{T0}, -1, 0", f"v_mbcnt_hi_u32_b32 v{T0}, -1, v{T0}",
                f"v_add_u32 v{T1}, s{sWV}, v{T0}", f"v_min_u32 v{T1}, 1, v{T1}", f"v_lshlrev_b32 v{T1}, 31, v{T1}",
                "s_and_b32 s7, s2, 7", "s_lshl_b32 s7, s7, 2", f"v_add_u32 v{KA}, s7, v{T1}", f"v_mov_b32 v{KA+1}, 1",
                f"v_lshrrev_b32 v{T1}, 3, v{T0}", f"v_min_u32 v{T1}, 1, v{T1}", f"v_lshlrev_b32 v{T1}, 31, v{T1}", f"v_lshl_add_u32 v{KA+2}, v{T0}, 2, v{T1}",
                "s_and_b32 s5, s2, 0xf8", "s_lshl_b32 s5, s5, 7", f"s_add_u32 s{sFB}, s5, {FL}"])
        g.seq = seq; g.pos = pos

    def schedule_dma(g):
        steps = g.steps
        need_at = {t: n for n, s in enumerate(steps) for t in s["tiles"]}
        cls = lambda t: {"K": "K", "V": "V", "x": "X"}.get(t[0], "W")
        q = {c: [t for s in steps for t in s["tiles"] if cls(t) == c] for c in "KVWX"}
        free = set(range(10)); where = {}
        plan = {}
        credit = g.kv0
        W0 = [7, 8, 9, 6][:g.wslots0]
        def allowed(c, n):
            xs = list(g.xslots) if (q["X"]) else []
            w0 = bool(q["W"]) and q["W"][0][:2] == ("q", 0)
            if c == "X": return list(g.xslots)
            if c == "K": return [s for s in [0, 1, 2, 3] if s not in xs]
            if c == "V": return [s for s in [4, 5, 6] if s not in xs and not (w0 and s in W0)]
            s = W0 if w0 else [7, 8, 9]
            if not q["V"]: s = s + [6, 5, 4]
            if not q["K"]: s = s + [3, 2, 1, 0]
            return s
        for n in range(-1, len(steps)):
            if n >= 1:
                for t in steps[n - 1]["tiles"]: free.add(where[t])
            if 0 <= n < 14: credit += g.pace
            L = []
            while True:
                if n == -1 and len(L) >= g.npro: break
                cands = []
                for c in "XWKV":
                    if not q[c]: continue
                    sl = [s for s in allowed(c, n) if s in free]
                    if not sl: continue
                    if c in "KV" and n < 14 and credit < 1: continue
                    cands.append((need_at[q[c][0]], "XWKV".index(c), c, sl[0]))
                if not cands: break
                _, _, c, sl = min(cands)
                t = q[c].pop(0); where[t] = sl; free.discard(sl); L.append(t)
                if c in "KV" and n < 14: credit -= 1
            plan[n] = L
        g.plan, g.where = plan, where

    def dma_pieces(g, t):
        ty, h, i = t
        slot = g.where[t]
        Ps = []
        for k in range(4):
            L = []
            if ty == "x":
                if k == 0: L.append(f"s_add_u32 m0, s{sLX}, {slot*16384}")
                L.append(f"buffer_load_dwordx4 v{XD+k}, s[{sX}:{sX+3}], s{sRHO+i} offen offset:{k*1024} {g.xpol} lds".replace("  ", " "))
                Ps.append((L, (t, k))); continue
            if k == 0:
                L.append(f"s_add_u32 m0, s{sLW}, {slot*16384}")
                if ty in "KV": L.append(f"s_add_u32 s{sT}, s{sKV}, {h*262144 + i*16384}")
                elif ty == "q":
                    L.append(f"s_lshl_b32 s{sT}, s{sRHO+(i>>1)}, 12"); L.append(f"s_add_u32 s{sT}, s{sT}, s{sWQB}")
                    c = h * 512 + (i & 1) * 32 * 8192
                    if c: L.append(f"s_add_u32 s{sT}, s{sT}, {c}")
                else:
                    if g.rs:
                        L.append(f"s_add_u32 s{sT}, s{sWOB}, s{sRHO+(i>>1)}")
                        if h or (i & 1): L.append(f"s_add_u32 s{sT}, s{sT}, {(h*256 + 128*(i&1))*896}")
                    else:
                        L.append(f"s_add_u32 s{sT}, s{sWOB}, {(h*256 + 128*(i&1))*896 + (i>>1)*128}")
            if k == 2:
                L.append(f"s_add_u32 m0, m0, 8192")
                L.append(f"s_add_u32 s{sT}, s{sT}, {8192 if ty in 'KV' else (16*8192 if ty == 'q' else 64*896)}")
            v = {"K": KD, "V": VD, "q": WD, "o": WD}[ty] + (k & 1)
            srd = {"K": sK, "V": sV, "q": sWQ, "o": sWO}[ty]
            pol = g.kvpol if ty in "KV" else g.wpol
            L.append(f"buffer_load_dwordx4 v{v}, s[{srd}:{srd+3}], s{sT} offen offset:{(k&1)*1024} {pol} lds".replace("  ", " "))
            Ps.append((L, (t, k)))
        return Ps

    def prologue(g):
        A = g.A
        A("s_cmp_ge_u32 s2, 256"); A("s_cbranch_scc1 L_end")
        if g.stamps and not g.cst: A(f"s_memrealtime s[{sSTAMP}:{sSTAMP+1}]")
        A("s_lshr_b32 s4, s2, 7")
        A("s_mul_i32 s7, s4, 40")
        A("s_add_u32 s4, s0, s7"); A("s_addc_u32 s5, s1, 0")
        A("s_load_dwordx4 s[84:87], s[4:5], 0")
        A("s_load_dwordx4 s[88:91], s[4:5], 16")
        A("s_load_dwordx2 s[92:93], s[4:5], 32")
        A("s_load_dwordx2 s[94:95], s[0:1], 96")
        if g.fuse or g.rs: A("s_load_dwordx4 s[80:83], s[0:1], 80")
        A("s_and_b32 s3, s2, 7")
        A("s_bfe_u32 s6, s2, 0x40003")
        A("v_lshrrev_b32 v1, 6, v0"); A(f"v_readfirstlane_b32 s{sWV}, v1")
        A("v_and_b32 v2, 63, v0")
        if g.cpf:
            A("s_getpc_b64 s[96:97]")
            A("s_lshr_b32 s7, s2, 3"); A("s_and_b32 s7, s7, 31")
            A("v_lshlrev_b32 v10, 7, v0")
            A("s_and_b32 s7, s7, 3"); A("s_lshl_b32 s7, s7, 15"); A("v_add_u32 v10, s7, v10")
            A("v_min_u32 v10, CODE_BYTES, v10")
            A("global_load_dword v11, v10, s[96:97]")
            g.pre_vm = 1
        A("v_lshrrev_b32 v3, 5, v2")
        A("v_and_b32 v4, 31, v2")
        A(f"s_lshl_b32 s{sLW}, s{sWV}, 11"); A(f"s_lshl_b32 s{sLX}, s{sWV}, 12")
        A(f"s_lshl_b32 s{sKV}, s6, 22"); A("s_lshl_b32 s7, s3, 19"); A(f"s_add_u32 s{sKV}, s{sKV}, s7"); A(f"s_add_u32 s{sKV}, s{sKV}, s{sLW}")
        A(f"s_lshl_b32 s{sWQB}, s{sWV}, 15"); A("s_lshl_b32 s7, s3, 10"); A(f"s_add_u32 s{sWQB}, s{sWQB}, s7")
        if g.rot:
            A("s_mul_i32 s7, s6, 37"); A("s_lshr_b32 s7, s7, 8"); A("s_mul_i32 s7, s7, 7"); A("s_sub_u32 s7, s6, s7"); A(f"s_lshl_b32 s{sRHO}, s7, 7")
        else: A(f"s_mov_b32 s{sRHO}, 0")
        for i in range(1, 7):
            A(f"s_add_u32 s7, s{sRHO+i-1}, 128"); A(f"s_cmp_eq_u32 s7, 896"); A(f"s_cselect_b32 s{sRHO+i}, 0, s7")
        A("v_lshrrev_b32 v5, 3, v2"); A(f"s_lshl_b32 s7, s{sWV}, 5"); A("v_add_u32 v5, s7, v5")
        A("v_lshrrev_b32 v6, 4, v2"); A("v_and_b32 v7, 7, v2"); A("v_xor_b32 v6, v6, v7"); A("v_lshlrev_b32 v6, 4, v6")
        A("s_mul_i32 s7, s6, 100352")
        A("v_add_u32 v6, s7, v6")
        for k in range(4):
            A(f"v_add_u32 v7, {8*k}, v5"); A("v_min_u32 v7, 111, v7"); A("v_mul_u32_u24 v7, 896, v7")
            if k & 1: A("v_xor_b32 v8, 64, v6"); A(f"v_add_u32 v{XD+k}, v7, v8")
            else: A(f"v_add_u32 v{XD+k}, v7, v6")
            if k: A(f"v_subrev_u32 v{XD+k}, {k*1024}, v{XD+k}")
        A("v_lshlrev_b32 v5, 2, v3"); A("v_xor_b32 v5, v4, v5"); A("v_lshlrev_b32 v5, 4, v5")
        A(f"v_lshl_add_u32 v{WD}, v3, 13, v5"); A(f"v_xor_b32 v{WD+1}, 0x80, v{WD}"); A(f"v_add_u32 v{WD+1}, {2*8192-1024}, v{WD+1}")
        A(f"v_lshl_add_u32 v{VD}, v3, 9, v5"); A(f"v_xor_b32 v{VD+1}, 0x80, v{VD}")
        A("s_waitcnt lgkmcnt(0)")
        def srd(d, src, n):
            A(f"s_mov_b32 s{d}, s{src}"); A(f"s_mov_b32 s{d+1}, s{src+1}"); A(f"s_mov_b32 s{d+2}, {n}"); A(f"s_mov_b32 s{d+3}, 0x20000")
        g.srd = srd
        srd(sX, 84, 16*112*896); srd(sWQ, 90, 448*8192)

    def addr_setup(g):
        A = g.A; srd = g.srd
        srd(sK, 86, 1 << 26); srd(sV, 88, 1 << 26); srd(sWO, 92, 4096*896); srd(sWS, 94, 256*100352 + (1 << 20 if (g.stamps or g.dbg or g.rs) else 0))
        if g.rs: srd(sDB, 82, 256)
        A(f"s_lshl_b32 s{sWOB}, s3, 9"); A(f"s_lshl_b32 s7, s{sWV}, 4"); A(f"s_add_u32 s{sWOB}, s{sWOB}, s7"); A(f"s_mul_i32 s{sWOB}, s{sWOB}, 896")
        A(f"s_mul_i32 s{sST}, s2, 100352")
        A(f"s_mov_b32 s{sC}, {f2u(math.log2(math.e)/16.0):#x}")
        A(f"s_mov_b32 s{sK0}, {f2u(g.thr_log2*16.0/math.log2(math.e)):#x}")
        A(f"s_mov_b32 s{sFLAG}, 0")
        A(f"s_lshl_b32 s7, s{sWV}, 2"); A("v_add_u32 v5, s7, v3"); A("v_xor_b32 v5, v4, v5"); A("v_lshlrev_b32 v5, 4, v5")
        A(f"v_lshl_add_u32 v{KD}, v3, 9, v5"); A(f"v_xor_b32 v{KD+1}, 32, v{KD}")
        A("v_bfe_u32 v5, v4, 1, 3"); A("v_xor_b32 v5, v5, v3"); A("v_lshlrev_b32 v5, 4, v5"); A(f"v_lshl_add_u32 v{XR}, v4, 7, v5")
        A(f"v_add_u32 v{XR}, s{sLX}, v{XR}"); A(f"v_add_u32 v{XR}, 0x8000, v{XR}")
        for s in range(1, 4): A(f"v_xor_b32 v{XR+s}, {s<<5}, v{XR}")
        A("v_and_b32 v5, 15, v4"); A("v_xor_b32 v5, v5, v3"); A("v_lshlrev_b32 v5, 4, v5"); A(f"v_lshl_add_u32 v{KA}, v4, 9, v5")
        for s in range(1, 8): A(f"v_xor_b32 v{KA+s}, {s<<5}, v{KA}")
        A("v_bfe_u32 v5, v2, 2, 2")
        A("v_lshlrev_b32 v6, 9, v5"); A("v_lshl_add_u32 v6, v5, 6, v6")
        A("v_and_b32 v7, 16, v2"); A("v_lshl_add_u32 v6, v7, 1, v6")
        A("v_and_b32 v7, 3, v2")
        A(f"v_lshl_add_u32 v{VA}, v7, 3, v6"); A(f"v_lshl_add_u32 v{VA}, v3, 11, v{VA}"); A(f"v_add_u32 v{VA}, 0x10000, v{VA}")
        for s in range(1, 4): A(f"v_xor_b32 v{VA+s}, {s<<6}, v{VA}")
        A("v_and_b32 v8, 1, v2"); A("v_lshlrev_b32 v8, 4, v8"); A("v_and_b32 v9, 2, v2"); A("v_lshl_add_u32 v8, v9, 2, v8")
        A(f"v_add_u32 v{WA}, v6, v8"); A(f"v_lshl_add_u32 v{WA}, v3, 12, v{WA}"); A(f"v_add_u32 v{WA}, 0x18000, v{WA}")
        for s in range(1, 4): A(f"v_xor_b32 v{WA+s}, {s<<6}, v{WA}")
        g.base = {"K": 0, "V": 4 * 16384, "W": 6 * 16384}

    def emit_read(g, op, fr):
        A = g.A
        slot = g.where[op["tile"]]
        for n, (kind, aset, ai, imm) in enumerate(op["reads"]):
            tgt = slot * 16384
            if not (g.base[aset] <= tgt and tgt + 16383 - g.base[aset] <= 65535):
                nb = {"K": 0, "V": 4 * 16384, "W": 6 * 16384}[aset]
                if not (nb <= tgt and tgt + 16383 - nb <= 65535): nb = (slot // 4) * 4 * 16384 if slot < 8 else 6 * 16384
                rb, cnt = {"K": (KA, 8), "V": (VA, 4), "W": (WA, g.wcnt)}[aset]
                for r in range(cnt): A(f"v_add_u32 v{rb+r}, {(nb - g.base[aset]) & 0xffffffff:#x}, v{rb+r}")
                g.base[aset] = nb
            off = tgt + imm - g.base[aset]
            ar = {"K": KA, "V": VA, "W": WA}[aset] + ai
            if kind == "b128": A(f"ds_read_b128 {R(fr[0], fr[1], 4)}, v{ar} offset:{off}")
            else: A(f"ds_read_b64_tr_b16 {R(fr[0], fr[1]+2*n, 2)}, v{ar} offset:{off}")
            g.nrd += 1
        op["rd_last"] = g.nrd - 1

    def emit_main(g):
        A = g.A
        ops, steps = g.ops, g.steps
        N = len(ops)
        g.wcnt = 4
        vm = [("pf", 0)] * getattr(g, "pre_vm", 0)
        def vmit(L, key):
            for l in L:
                if not (g.nodma and l.startswith("buffer_load")): A(l)
            vm.append(key)
        for t in g.plan[-1]:
            for L, key in g.dma_pieces(t): vmit(L, key)
        g.addr_setup()
        bpos = {}
        for n, s in enumerate(steps): bpos[max(0, s["first"] - g.boff)] = n
        bp = {n: p for p, n in bpos.items()}
        load = [0.0] * (N + 2)
        for i, op in enumerate(ops):
            p = max(i - g.dist, bp[op["step"]])
            load[p] += len(op["reads"]); load[i] += 0.5 if g.pair else 1
        for p in bpos: load[p] += 2
        for p, L in g.fill.items(): load[p] += cost(L)
        dma_at = {}
        last_wq_pos = 0; first_wo_pos = None
        for n, s in enumerate(steps):
            Pc = [x for t in g.plan[n] for x in g.dma_pieces(t)]
            if not Pc: continue
            p0 = bp[n] + 1
            p1 = (bp[n + 1] - 1) if n + 1 < len(steps) else N - 1
            w = [g.qkw if (p + g.dist < N and ops[min(N - 1, p + 2)]["tile"][0] == "K") else 1.0 for p in range(p0, p1 + 1)]
            tot = sum(w); acc = 0.0; k = 0
            for idx, p in enumerate(range(p0, p1 + 1)):
                while k < len(Pc) and (k + 0.0) * tot / len(Pc) <= acc + 1e-9:
                    x = Pc[k]; k += 1
                    dma_at.setdefault(p, []).append(x); load[p] += len(x[0]) + 1
                    if x[1][0][0] == "q": last_wq_pos = p
                    if x[1][0][0] == "o" and first_wo_pos is None: first_wo_pos = p
                acc += w[idx]
            assert k == len(Pc)
        assert first_wo_pos > last_wq_pos + 1, (first_wo_pos, last_wq_pos)
        g.fill.setdefault(last_wq_pos + 1, []).insert(0, g.wo_d); load[last_wq_pos + 1] += len(g.wo_d)
        last_wq_op = max(i for i, o in enumerate(ops) if o["tile"][0] == "q")
        wo_r_pos = last_wq_op + 6; load[wo_r_pos] += len(g.wo_r)
        for instrs, p0, p1 in g.streams:
            C = sum(cost(x) for x in instrs)
            lo, hi = 0.0, 400.0
            for _ in range(40):
                mid = (lo + hi) / 2
                if sum(max(0.0, mid - load[p]) for p in range(p0, p1 + 1)) >= C: hi = mid
                else: lo = mid
            cap = [max(0.0, hi - load[p]) for p in range(p0, p1 + 1)]
            cum = 0.0; used = 0.0; k = 0
            for idx, p in enumerate(range(p0, p1 + 1)):
                cum += cap[idx]
                while k < len(instrs) and (used + cost(instrs[k]) / 2.0 <= cum + 1e-6 or p == p1):
                    g.fill.setdefault(p, []).append(instrs[k]); c = cost(instrs[k]); used += c; load[p] += c; k += 1
        g.load = load
        g.nrd = 0; rd_done = -1; next_rd = 0
        stamp_i = 1
        for i in range(N + 1):
            if g.cst and i in g.cst:
                k = g.cst.index(i); A(f"s_memtime s[{sSTAMP+2*k}:{sSTAMP+2*k+1}]")
            if i in bpos:
                n = bpos[i]; s = steps[n]
                if g.stamps and not g.cst and s["name"] in (("wq0_0", "a0", "a16", "wo1_6_0") if g.fuse else ("wq0_0", "a0", "a8", "a16", "a24", "wo1_6_0")):
                    A(f"s_memrealtime s[{sSTAMP+2*stamp_i}:{sSTAMP+2*stamp_i+1}]"); A(f"s_memtime s[{84+2*stamp_i}:{85+2*stamp_i}]"); stamp_i += 1
                last = max(vm.index((t, 3)) for t in s["tiles"])
                pub = None
                if g.rs and s["first"] in g.pos and g.pos.index(s["first"]) >= g.publag:
                    pub = g.pos.index(s["first"]) - g.publag
                    sts = [ix for ix, kk in enumerate(vm) if kk[0] == "st4"]
                    assert len(sts) >= 4 * (pub + 1), (len(sts), pub)
                    last = max(last, sts[4 * pub + 3])
                cnt = min(63, len(vm) - 1 - last)
                if g.nowait: cnt = 63
                A(f"; ---- step {n} {s['name']}")
                A(f"s_waitcnt vmcnt({cnt}) lgkmcnt(0)"); rd_done = g.nrd - 1
                A("s_barrier")
                if pub is not None:
                    A(f"s_add_u32 s5, s{sFB}, s{sRHO+g.seq[pub]}")
                    A(f"buffer_store_dword v{KA+1}, v{KA}, s[{sWS}:{sWS+3}], s5 offen sc1"); vm.append(("fl", pub))
                for t in s["tiles"]:
                    if t[0] == "x":
                        for ks in range(4):
                            A(f"ds_read_b128 {R('a', XA + 16*t[2] + 4*ks, 4)}, v{XR+ks} offset:{(g.where[t]-2)*16384}"); g.nrd += 1
            if i == wo_r_pos:
                for l in g.wo_r: A(l)
                g.base["W"] = 0; g.wcnt = 2
            while next_rd < N and next_rd <= i + g.dist and bp[ops[next_rd]["step"]] <= i:
                g.emit_read(ops[next_rd], FR[next_rd % len(FR)]); next_rd += 1
            for L, key in dma_at.get(i, []): vmit(L, key)
            for l in flat(g.fill.get(i, [])):
                if l.startswith("@VM "): A(l[4:]); vm.append(("st4" if "dwordx4" in l else "st", len(vm)))
                else: A(l)
            if i == N: break
            op = ops[i]
            if op["rd_last"] > rd_done:
                tgt = op["rd_last"]
                if g.pair and i + 1 < next_rd and i + 3 < next_rd: tgt = ops[i + 1]["rd_last"]
                c = g.nrd - 1 - tgt
                assert c <= 15
                A(f"s_waitcnt lgkmcnt({c})"); rd_done = tgt
            fr = FR[i % len(FR)]
            D = R(op["D"][0], op["D"][1], 16)
            A(f"v_mfma_f32_32x32x16_bf16 {D}, {R(fr[0], fr[1], 4)}, {R(op['B'][0], op['B'][1], 4)}, {'0' if op['zero'] else D}")

    def fused_reduce(g):
        A = g.A
        A(f"v_mbcnt_lo_u32_b32 v200, -1, 0"); A(f"v_mbcnt_hi_u32_b32 v200, -1, v200")
        A(f"s_lshl_b32 s7, s{sWV}, 6"); A("v_add_u32 v200, s7, v200")
        A("s_and_b32 s3, s2, 7"); A("s_bfe_u32 s6, s2, 0x40003"); A("s_lshr_b32 s4, s2, 7")
        A("s_mov_b32 s5, 2341")
        A("s_mul_i32 s7, s3, 448")
        for r in range(4):
            i, th, rem, lo, so = 201, 202, 203, 208 + r, 212 + r
            A(f"v_add_u32 v{i}, {256*r}, v200")
            A(f"v_mul_u32_u24 v{th}, s5, v{i}"); A(f"v_lshrrev_b32 v{th}, 16, v{th}")
            A(f"v_mul_u32_u24 v{rem}, 28, v{th}"); A(f"v_sub_u32 v{rem}, v{i}, v{rem}")
            A(f"v_mul_u32_u24 v{lo}, 3584, v{th}"); A(f"v_lshl_add_u32 v{lo}, v{rem}, 4, v{lo}"); A(f"v_add_u32 v{lo}, s7, v{lo}")
            A(f"v_lshrrev_b32 v{so}, 1, v{rem}"); A(f"v_mul_u32_u24 v{so}, 1792, v{so}"); A(f"v_lshl_add_u32 v{so}, v{th}, 5, v{so}")
            A(f"v_and_b32 v{rem}, 1, v{rem}"); A(f"v_lshl_add_u32 v{so}, v{rem}, 3, v{so}")
            if r == 3:
                A(f"v_cmp_lt_u32 vcc, 783, v{i}"); A(f"v_bfrev_b32 v{th}, 1"); A("s_nop 0")
                A(f"v_cndmask_b32 v{lo}, v{lo}, v{th}, vcc"); A(f"v_cndmask_b32 v{so}, v{so}, v{th}, vcc")
        A("s_mov_b32 s8, s80"); A("s_mov_b32 s9, s81"); A(f"s_mov_b32 s10, {16*112*896*2}"); A("s_mov_b32 s11, 0x20000")
        A("s_mov_b32 s12, s82"); A("s_mov_b32 s13, s83"); A("s_mov_b32 s14, 256"); A("s_mov_b32 s15, 0x20000")
        A("s_lshr_b32 s16, s2, 3"); A("s_mul_i32 s17, s16, 802816")
        A("s_lshl_b32 s16, s16, 2")
        A("s_mul_i32 s18, s6, 112"); A("s_mul_i32 s19, s3, 14"); A("s_add_u32 s18, s18, s19"); A("s_mul_i32 s18, s18, 1792")
        A("s_mul_i32 s19, s4, 896"); A("s_add_u32 s18, s18, s19")
        A("v_mov_b32 v204, 0"); A("v_mov_b32 v205, 1")
        A("s_waitcnt vmcnt(0)"); A("s_barrier")
        A(f"s_cmp_lg_u32 s{sWV}, 0"); A("s_cbranch_scc1 L_wait")
        A("s_mov_b64 exec, 1")
        A("buffer_atomic_add v205, v204, s[12:15], s16 offen sc1")
        A("s_mov_b32 s20, 0x100000")
        A("L_poll:")
        A("buffer_load_dword v206, v204, s[12:15], s16 offen sc1")
        A("s_waitcnt vmcnt(0)")
        A("v_readfirstlane_b32 s21, v206")
        A("s_sub_u32 s20, s20, 1"); A("s_cbranch_scc1 L_pdone")
        A("s_cmp_lt_u32 s21, 8"); A("s_cbranch_scc1 L_poll")
        A("L_pdone:")
        A("s_mov_b64 exec, -1")
        A("L_wait:")
        A("s_barrier")
        if g.stamps and not g.cst: A(f"s_memrealtime s[{sSTAMP+12}:{sSTAMP+13}]"); A("s_memtime s[96:97]")
        for r in range(4):
            for p in range(8):
                if p == 0: A("s_mov_b32 s19, s17")
                else: A("s_add_u32 s19, s19, 100352")
                d = 32 * r + 4 * p
                A(f"buffer_load_dwordx4 v[{d}:{d+3}], v{208+r}, s[{sWS}:{sWS+3}], s19 offen sc1")
        nst = 0
        for r in range(4):
            acc = 128 + 16 * r
            for p in range(8):
                A(f"s_waitcnt vmcnt({31 - (8*r+p) + nst})")
                for d in range(4):
                    src = 32 * r + 4 * p + d
                    if p == 0:
                        A(f"v_lshlrev_b32 v{acc+2*d}, 16, v{src}"); A(f"v_and_b32 v{acc+1+2*d}, 0xffff0000, v{src}")
                    else:
                        A(f"v_lshlrev_b32 v201, 16, v{src}"); A(f"v_and_b32 v202, 0xffff0000, v{src}")
                        A(f"v_add_f32 v{acc+2*d}, v{acc+2*d}, v201"); A(f"v_add_f32 v{acc+1+2*d}, v{acc+1+2*d}, v202")
            for d in range(4): A(f"v_cvt_pk_bf16_f32 v{acc+8+d}, v{acc+2*d}, v{acc+1+2*d}")
            A(f"buffer_store_dwordx2 v[{acc+8}:{acc+9}], v{212+r}, s[8:11], s18 offen")
            A(f"buffer_store_dwordx2 v[{acc+10}:{acc+11}], v{212+r}, s[8:11], s18 offen offset:16")
            nst += 2

    def rs_tail(g):
        A = g.A
        seq = g.seq
        A("s_and_b32 s3, s2, 7")
        A("s_cmp_eq_u32 s3, 7"); A("s_cbranch_scc1 L_wg7")
        A("s_lshl_b32 s16, s3, 7"); A(f"s_add_u32 s16, s16, s{sFB}")
        A(f"buffer_load_dword v{KA+3}, v{KA+2}, s[{sWS}:{sWS+3}], s16 offen sc1")
        A("s_mov_b32 s8, s80"); A("s_mov_b32 s9, s81"); A(f"s_mov_b32 s10, {16*112*896*2}"); A("s_mov_b32 s11, 0x20000")
        A(f"v_lshrrev_b32 v{T0}, 5, v{XV}"); A(f"v_mul_u32_u24 v{T0}, 1792, v{T0}"); A(f"v_and_b32 v{T1}, 0x80000010, v{XV}"); A(f"v_add_u32 v{KA+4}, v{T0}, v{T1}")
        A("s_bfe_u32 s6, s2, 0x40003"); A("s_mul_i32 s18, s6, 200704"); A("s_lshr_b32 s4, s2, 7"); A("s_mul_i32 s4, s4, 896"); A("s_add_u32 s18, s18, s4")
        A("s_lshl_b32 s4, s3, 7"); A("s_add_u32 s18, s18, s4")
        A("s_and_b32 s17, s2, 0xf8"); A("s_mul_i32 s17, s17, 100352"); A("s_mul_i32 s4, s3, 14336"); A("s_add_u32 s17, s17, s4")
        A("s_mov_b32 s20, 0x40000")
        def publish(k):
            A(f"s_add_u32 s5, s{sFB}, s{sRHO+seq[k]}")
            A(f"buffer_store_dword v{KA+1}, v{KA}, s[{sWS}:{sWS+3}], s5 offen sc1")
        if g.publag == 3:
            A("s_waitcnt vmcnt(6)"); A("s_barrier"); publish(4); A("s_waitcnt vmcnt(1)")
        else: A("s_waitcnt vmcnt(0)")
        A("s_barrier"); publish(5)
        if g.stamps and not g.cst: A(f"s_memrealtime s[{sSTAMP+12}:{sSTAMP+13}]"); A("s_memtime s[96:97]")
        A(f"v_cmp_ne_u32 vcc, 0, v{KA+3}"); A("s_mov_b32 s21, s3"); A("s_nop 0"); A("s_mov_b32 s22, vcc_lo")
        def getld(k):
            if k < 6:
                A("s_sub_u32 s21, s21, 1"); A("s_cselect_b32 s21, 6, s21")
            else: A("s_mov_b32 s21, 7")
            A(f"L_w{k}:")
            A("s_bitcmp1_b32 s22, s21"); A(f"s_cbranch_scc1 L_ok{k}")
            A(f"buffer_load_dword v{KA+3}, v{KA+2}, s[{sWS}:{sWS+3}], s16 offen sc1"); A("s_waitcnt vmcnt(0)")
            A(f"v_cmp_ne_u32 vcc, 0, v{KA+3}"); A("s_sub_u32 s20, s20, 1"); A("s_cselect_b32 s22, -1, vcc_lo")
            A(f"s_branch L_w{k}")
            A(f"L_ok{k}:")
            A("s_mul_i32 s19, s21, 100352"); A("s_add_u32 s19, s19, s17")
            for u in range(4):
                d = 32 + 16 * k + 4 * u
                A(f"buffer_load_dwordx4 v[{d}:{d+3}], v{XV}, s[{sWS}:{sWS+3}], s19 offen sc1")
                if u < 3: A("s_add_u32 s19, s19, 3584")
        def add(k, after):
            for u in range(4):
                A(f"s_waitcnt vmcnt({after + 3 - u})")
                for d in range(4):
                    src = 32 + 16 * k + 4 * u + d; a = 8 * u + 2 * d
                    A(f"v_lshlrev_b32 v{T0}, 16, v{src}"); A(f"v_and_b32 v{T1}, 0xffff0000, v{src}")
                    A(f"v_add_f32 v{a}, v{a}, v{T0}"); A(f"v_add_f32 v{a+1}, v{a+1}, v{T1}")
        for k in range(4): getld(k)
        A(f"buffer_load_dword v{KA+3}, v{KA+2}, s[{sWS}:{sWS+3}], s16 offen sc1")
        for k in range(4): add(k, 1 + 4 * (3 - k))
        A("s_waitcnt vmcnt(0)")
        A(f"v_cmp_ne_u32 vcc, 0, v{KA+3}"); A("s_nop 1"); A("s_or_b32 s22, s22, vcc_lo")
        for k in range(4, 7): getld(k)
        for k in range(4, 7): add(k, 4 * (6 - k))
        for u in range(4):
            for d in range(4): A(f"v_cvt_pk_bf16_f32 v{32+4*u+d}, v{8*u+2*d}, v{8*u+2*d+1}")
            A(f"v_permlane32_swap_b32 v{32+4*u}, v{32+4*u+2}"); A(f"v_permlane32_swap_b32 v{32+4*u+1}, v{32+4*u+3}")
            A(f"buffer_store_dwordx4 v[{32+4*u}:{35+4*u}], v{KA+4}, s[8:11], s18 offen offset:{32*u}")
        A("s_branch L_fin")
        A("L_wg7:")
        A("s_nop 15")
        for l in flat(g.last_epi): A(l[4:] if l.startswith("@VM ") else l)
        A("s_waitcnt vmcnt(4)"); A("s_barrier")
        if g.publag == 3: publish(4)
        publish(5)
        A(f"s_waitcnt vmcnt({2 if g.publag == 3 else 1})"); A("s_barrier")
        publish(6)
        if g.stamps and not g.cst: A(f"s_memrealtime s[{sSTAMP+12}:{sSTAMP+13}]"); A("s_memtime s[96:97]")
        A("L_fin:")

    def rare(g):
        A = g.A
        if g.rs:
            A("L_hs:")
            A("s_mov_b32 s63, 0x40000"); A("s_lshr_b32 s5, s2, 3"); A("s_lshl_b32 s5, s5, 2"); A(f"v_mov_b32 v{T0}, 0")
            A("L_hs2:")
            A(f"buffer_load_dword v{T1}, v{T0}, s[{sDB}:{sDB+3}], s5 offen sc1"); A("s_waitcnt vmcnt(0)")
            A(f"v_readfirstlane_b32 s7, v{T1}")
            A("s_sub_u32 s63, s63, 1"); A("s_cbranch_scc1 L_hsb")
            A(f"s_cmp_lt_u32 s7, {32 if g.hs == 1 else 8}"); A("s_cbranch_scc1 L_hs2")
            A("s_branch L_hsb")
        for la, fn, lb in g.stubs:
            A(f"{la}:"); A(f"s_call_b64 s[{sRET}:{sRET+1}], {fn}"); A(f"s_branch {lb}")
        A("L_newmax:")
        A(f"v_mov_b32 v{TB}, v{TA}"); A(f"v_permlane32_swap_b32 v{TA}, v{TB}")
        A(f"v_max3_f32 v{M}, v{TA}, v{TB}, v{M}")
        A(f"v_mul_f32 v{TA}, s{sC}, v{M}")
        A(f"v_sub_f32 v{TB}, v{MC}, v{TA}"); A(f"v_exp_f32 v{TB}, v{TB}")
        A(f"v_mov_b32 v{MC}, v{TA}"); A(f"v_add_f32 v{THR}, s{sK0}, v{M}")
        A(f"v_mul_f32 v{LA}, v{LA}, v{TB}"); A(f"v_mul_f32 v{LB}, v{LB}, v{TB}")
        A(f"s_mov_b32 s{sFLAG}, 1")
        A(f"s_setpc_b64 s[{sRET}:{sRET+1}]")
        A("L_rescale:")
        A("s_nop 15")
        for r in range(128): A(f"v_mul_f32 v{OACC+r}, v{OACC+r}, v{TB}")
        A(f"s_mov_b32 s{sFLAG}, 0")
        A("s_nop 1")
        A(f"s_setpc_b64 s[{sRET}:{sRET+1}]")

    def reduce_kernel(g):
        L = []; A = L.append
        A("s_cmp_ge_u32 s2, 784"); A("s_cbranch_scc1 L_rend")
        A("s_load_dwordx2 s[4:5], s[0:1], 80"); A("s_load_dwordx2 s[6:7], s[0:1], 96")
        A("v_lshrrev_b32 v1, 6, v0"); A("v_readfirstlane_b32 s3, v1")
        A("s_lshl_b32 s16, s2, 2"); A("s_add_u32 s16, s16, s3")
        A(f"s_mul_i32 s17, s16, {math.ceil(2**20/98)}"); A("s_lshr_b32 s17, s17, 20")
        A("s_mul_i32 s18, s17, 98"); A("s_sub_u32 s18, s16, s18")
        A(f"s_mul_i32 s19, s18, {math.ceil(2**16/7)}"); A("s_lshr_b32 s19, s19, 16")
        A("s_mul_i32 s20, s19, 7"); A("s_sub_u32 s20, s18, s20")
        A("v_and_b32 v2, 15, v0"); A("v_bfe_u32 v3, v0, 4, 2")
        A("v_mul_u32_u24 v4, 3584, v3"); A("v_lshl_add_u32 v4, v2, 4, v4")
        A("s_mul_i32 s21, s17, 802816"); A("s_mul_i32 s22, s20, 14336"); A("s_add_u32 s21, s21, s22"); A("s_lshl_b32 s22, s19, 8"); A("s_add_u32 s21, s21, s22")
        A("s_waitcnt lgkmcnt(0)")
        A("s_mov_b32 s8, s6"); A("s_mov_b32 s9, s7"); A(f"s_mov_b32 s10, {256*100352}"); A("s_mov_b32 s11, 0x20000")
        A("s_mov_b32 s12, s4"); A("s_mov_b32 s13, s5"); A(f"s_mov_b32 s14, {16*112*896*2}"); A("s_mov_b32 s15, 0x20000")
        for p in range(8):
            A(f"buffer_load_dwordx4 v[{8+4*p}:{11+4*p}], v4, s[8:11], s21 offen {g.rdpol}".rstrip())
            if p < 7: A("s_add_u32 s21, s21, 100352")
        A("v_lshrrev_b32 v5, 1, v2"); A("v_mul_u32_u24 v5, 1792, v5"); A("v_lshl_add_u32 v5, v3, 5, v5"); A("v_and_b32 v6, 1, v2"); A("v_lshl_add_u32 v5, v6, 3, v5")
        A("s_and_b32 s22, s17, 15"); A("s_mul_i32 s22, s22, 112"); A("s_lshl_b32 s23, s19, 3"); A("s_add_u32 s22, s22, s23"); A("s_mul_i32 s22, s22, 1792")
        A("s_lshr_b32 s23, s17, 4"); A("s_mul_i32 s23, s23, 896"); A("s_add_u32 s22, s22, s23"); A("s_lshl_b32 s23, s20, 7"); A("s_add_u32 s22, s22, s23")
        for p in range(8):
            A(f"s_waitcnt vmcnt({7-p})")
            for d in range(4):
                src = 8 + 4 * p + d
                if p == 0:
                    A(f"v_lshlrev_b32 v{40+2*d}, 16, v{src}"); A(f"v_and_b32 v{41+2*d}, 0xffff0000, v{src}")
                else:
                    A(f"v_lshlrev_b32 v6, 16, v{src}"); A(f"v_and_b32 v7, 0xffff0000, v{src}")
                    A(f"v_add_f32 v{40+2*d}, v{40+2*d}, v6"); A(f"v_add_f32 v{41+2*d}, v{41+2*d}, v7")
        for d in range(4): A(f"v_cvt_pk_bf16_f32 v{48+d}, v{40+2*d}, v{41+2*d}")
        A("buffer_store_dwordx2 v[48:49], v5, s[12:15], s22 offen")
        A("buffer_store_dwordx2 v[50:51], v5, s[12:15], s22 offen offset:16")
        A("L_rend:"); A("s_endpgm")
        return fix_hazards(L)[0]

    def generate(g):
        if g.rs: g.fuse = True
        if g.fuse: g.stpol = "sc1"
        g.build_program(); g.schedule_dma()
        if g.fuse: g.stpol = "sc1"
        g.build_program_done = True
        g.prologue(); g.emit_main()
        A = g.A
        if g.fuse:
            if g.stamps and not g.cst: A(f"s_memrealtime s[{sSTAMP+10}:{sSTAMP+11}]"); A("s_memtime s[94:95]")
            g.rs_tail() if g.rs else g.fused_reduce()
        if g.stamps:
            A("s_waitcnt vmcnt(0)")
            if not g.cst: A(f"s_memrealtime s[{sSTAMP+14}:{sSTAMP+15}]"); A("s_memtime s[98:99]")
            A("s_waitcnt lgkmcnt(0)")
            for i in range(8): A(f"v_mov_b32 v{i}, s{sSTAMP+2*i}")
            for i in range(8): A(f"v_mov_b32 v{12+i}, s{84+2*i}")
            A(f"s_lshl_b32 s3, s2, 5"); A(f"s_add_u32 s3, s3, {256*100352+0x10000}"); A("v_mov_b32 v8, 0"); A("v_mov_b32 v9, 0x2000")
            A(f"s_cmp_lg_u32 s{sWV}, 0"); A("s_cbranch_scc1 L_end")
            A(f"buffer_store_dwordx4 v[0:3], v8, s[{sWS}:{sWS+3}], s3 offen"); A(f"buffer_store_dwordx4 v[4:7], v8, s[{sWS}:{sWS+3}], s3 offen offset:16")
            A(f"buffer_store_dwordx4 v[12:15], v9, s[{sWS}:{sWS+3}], s3 offen"); A(f"buffer_store_dwordx4 v[16:19], v9, s[{sWS}:{sWS+3}], s3 offen offset:16")
        A("L_end:"); A("s_endpgm")
        g.rare()
        body, nops = fix_hazards(g.L)
        g.nops = nops
        hdr = open("cdna_kernels/" + NAME + ".s.ref").read().split("; Override launch")[0]
        o = [hdr.rstrip()]
        if g.fuse: o.append(f"; @launch grid=(256,1,1) block=(256,1,1) lds=163840")
        else: o.append(f"; @launch kernel={NAME}_kernel grid=(256,1,1) block=(256,1,1) lds=163840")
        if not g.noreduce and not g.fuse: o.append(f"; @launch kernel=reduce_kernel grid=(784,1,1) block=(256,1,1) lds=0")
        o += ['.amdgcn_target "amdgcn-amd-amdhsa--gfx950"', ".text"]
        if not g.fuse:
            o += [".globl reduce_kernel", ".p2align 8", ".type reduce_kernel,@function", "reduce_kernel:"]
            o += g.reduce_kernel()
        o += [f".globl {NAME}_kernel", ".p2align 8", f".type {NAME}_kernel,@function", f"{NAME}_kernel:"]
        o += body
        o += ["L_codeend:", f".set CODE_BYTES, L_end - {NAME}_kernel - 256"]
        def kd(n, v, acc, s):
            return [".p2align 6", f".amdhsa_kernel {n}", f"  .amdhsa_next_free_vgpr {v}", f"  .amdhsa_next_free_sgpr {s}", f"  .amdhsa_accum_offset {acc}",
                    "  .amdhsa_group_segment_fixed_size 0", "  .amdhsa_kernarg_size 104", "  .amdhsa_user_sgpr_count 2",
                    "  .amdhsa_user_sgpr_kernarg_segment_ptr 1", "  .amdhsa_system_sgpr_workgroup_id_x 1", ".end_amdhsa_kernel"]
        o += ['.section .rodata,"a"'] + kd(NAME + "_kernel", 512, 256, 102) + ([] if g.fuse else kd("reduce_kernel", 56, 56, 32))
        return "\n".join(o) + "\n"

if __name__ == "__main__":
    out = sys.argv[1] if len(sys.argv) > 1 else "k.s"
    kw = {}; verbose = False
    for a in sys.argv[2:]:
        if a == "-v": verbose = True; continue
        k, v = a.split("=", 1)
        try: v = eval(v)
        except Exception: pass
        kw[k] = v
    g = Gen(**kw)
    txt = g.generate()
    open(out, "w").write(txt)
    print(out, "bytes", len(txt), "lines", txt.count("\n"), "nops", g.nops)
    if verbose:
        for n in range(-1, len(g.steps)):
            f = g.steps[n]["first"] if n >= 0 else 0
            e = g.steps[n + 1]["first"] if n + 1 < len(g.steps) else len(g.ops)
            print(n, g.steps[n]["name"] if n >= 0 else "pro", f, [("".join(map(str, t)), g.where[t]) for t in g.plan[n]], " ".join(f"{x:.0f}" for x in g.load[f:e]) if n >= 0 else "")
```
